```python
import torch

def _softmax(x, axis=-1):
    return torch.softmax(x, dim=axis)
def _gelu(x):
    return torch.nn.functional.gelu(x, approximate="tanh")
def _silu(x):
    return torch.nn.functional.silu(x)
def _sigmoid(x):
    return torch.sigmoid(x)
def _layernorm(x, axis=-1, eps=1e-5):
    m = x.mean(dim=axis, keepdim=True)
    v = x.var(dim=axis, keepdim=True, unbiased=False)
    return (x - m) / torch.sqrt(v + eps)
def _scatter_add(tgt, idx, src, axis=0):
    return tgt.clone().index_add_(axis, idx, src)
def _segment_sum(src, seg, n):
    out = torch.zeros((n,) + src.shape[1:], dtype=src.dtype)
    return out.index_add_(0, seg, src)
def _pad(x, pw):
    flat = tuple(v for pair in reversed(pw) for v in pair)
    return torch.nn.functional.pad(x, flat)

kernel_name = 'sequential_preLN__linear_attn_block__swiglu_ffn__prompt'

def setup_inputs():

    _w = (lambda a: (lambda t: t.to(torch.bfloat16) if t.is_floating_point() else t)(torch.as_tensor(a)))
    def _A_setup():
        B, S, D = 1, 2048, 512
        return {
            "x": _w((lambda *s: torch.randn(*s, dtype=torch.bfloat16) * 0.05)(B, S, D)),
            "wqkv": _w((lambda *s: torch.randn(*s, dtype=torch.bfloat16) * 0.05)(D, 3 * D)),
            "wo": _w((lambda *s: torch.randn(*s, dtype=torch.bfloat16) * 0.05)(D, D)),
        }
    _A_in = _A_setup()

    def _B_setup():
        B, S, D, F = 1, 2048, 512, 1376
        return {
            "x": _w((lambda *s: torch.randn(*s, dtype=torch.bfloat16) * 0.05)(B, S, D)),
            "w_gate": _w((lambda *s: torch.randn(*s, dtype=torch.bfloat16) * 0.05)(D, F)),
            "w_up": _w((lambda *s: torch.randn(*s, dtype=torch.bfloat16) * 0.05)(D, F)),
            "w_down": _w((lambda *s: torch.randn(*s, dtype=torch.bfloat16) * 0.05)(F, D)),
        }
    _B_in = _B_setup()

    return {
        "A_x": _A_in["x"],
        "A_wqkv": _A_in["wqkv"],
        "A_wo": _A_in["wo"],
        "B_x": _B_in["x"],
        "B_w_gate": _B_in["w_gate"],
        "B_w_up": _B_in["w_up"],
        "B_w_down": _B_in["w_down"],
    }

def reference(A_x, A_wqkv, A_wo, B_x, B_w_gate, B_w_up, B_w_down):
    def _A_ref(x, wqkv, wo):
        B, S, D = x.shape
        H = 32; Dh = D // H
        qkv = (lambda x, *d: x.permute(*d))((x @ wqkv).reshape(B, S, 3, H, Dh), 2, 0, 3, 1, 4)
        q, k, v = qkv[0], qkv[1], qkv[2]
        phi = lambda t: torch.where(t > 0, t + 1, torch.exp(t)) + 1e-6
        pq, pk = phi(q), phi(k)
        kv = torch.einsum("bhsd,bhse->bhde", pk, v)
        z = torch.einsum("bhsd->bhd", pk)
        num = torch.einsum("bhqd,bhde->bhqe", pq, kv)
        den = torch.einsum("bhqd,bhd->bhq", pq, z)[..., None] + 1e-6
        o = num / den
        return (lambda x, *d: x.permute(*d))(o, 0, 2, 1, 3).reshape(B, S, D) @ wo

    def _B_ref(x, w_gate, w_up, w_down):
        g = _silu(x @ w_gate)
        u = x @ w_up
        return (g * u) @ w_down

    x = A_x
    h = x + _A_ref(_layernorm(x, axis=-1), A_wqkv, A_wo)
    h2 = h + _B_ref(_layernorm(h, axis=-1), B_w_gate, B_w_up, B_w_down)
    return h2
```

```python
import re

REG_RE = re.compile(r'^(-?)(?:abs\()?([vas])(?:(\d+)|\[(\d+):(\d+)\])\)?$')

def regs_of(op):
    op = op.strip()
    if op.startswith('|') and op.endswith('|'):
        op = op[1:-1]
    if op.startswith('-|'):
        op = op[2:-1]
    m = REG_RE.match(op)
    if m:
        k = m.group(2)
        if m.group(3) is not None:
            return [(k, int(m.group(3)))]
        return [(k, i) for i in range(int(m.group(4)), int(m.group(5)) + 1)]
    if op == 'vcc':
        return [('s', 'vcc')]
    if op in ('vcc_lo', 'vcc_hi'):
        return [('s', 'vcc')]
    if op in ('exec', 'exec_lo', 'exec_hi'):
        return [('s', 'exec')]
    if op == 'm0':
        return [('s', 'm0')]
    return []

TRANS = ('v_exp_f32', 'v_log_f32', 'v_rcp_f32', 'v_rsq_f32', 'v_sqrt_f32', 'v_sin_f32', 'v_cos_f32')

class Ins:
    __slots__ = ('text', 'mn', 'ops', 'mods', 'rd', 'wr', 'kind', 'tag', 'passes', 'srcc', 'srcab', 'meta')
    def __init__(self, text, tag=None):
        self.text = text
        self.tag = tag
        self.meta = None
        t = text.split(';')[0].strip()
        parts = t.split(None, 1)
        self.mn = parts[0] if parts else ''
        rest = parts[1] if len(parts) > 1 else ''
        ops, mods = [], []
        parts2 = [o.strip() for o in rest.split(',')] if rest else []
        for k, o in enumerate(parts2):
            toks = o.split()
            ops.append(toks[0])
            if len(toks) > 1:
                mods = (' '.join(toks[1:]) + ''.join(',' + x for x in parts2[k + 1:])).split()
                break
        self.ops, self.mods = ops, mods
        self.rd, self.wr = set(), set()
        self.passes = 0
        self.srcc, self.srcab = set(), set()
        self.classify()

    def R(self, i):
        return set(regs_of(self.ops[i])) if i < len(self.ops) else set()

    def classify(self):
        mn, ops = self.mn, self.ops
        allr = lambda a: set().union(*[self.R(i) for i in range(a, len(ops))]) if len(ops) > a else set()
        if mn.endswith(':') or mn.startswith('.'):
            self.kind = 'label'
        elif mn.startswith('@'):
            self.kind = 'pseudo'
        elif mn.startswith('v_mfma'):
            self.kind = 'mfma'
            self.wr = self.R(0)
            self.srcab = self.R(1) | self.R(2)
            self.srcc = self.R(3)
            self.rd = self.srcab | self.srcc
            self.passes = 8 if '32x32' in mn else 4
            assert 'bf16' in mn
        elif mn.startswith('v_'):
            self.kind = 'valu'
            self.wr = self.R(0)
            self.rd = allr(1)
            if mn.startswith(('v_permlane16_swap', 'v_permlane32_swap', 'v_swap')):
                self.wr = self.R(0) | self.R(1)
                self.rd = self.R(0) | self.R(1)
            if mn.startswith(('v_fmac', 'v_dot2c', 'v_pk_fmac', 'v_writelane')) or '_dpp' in mn:
                self.rd |= self.R(0)
            if mn.startswith(('v_add_co', 'v_sub_co', 'v_addc_co')):
                self.wr = self.R(0) | self.R(1)
                self.rd = allr(2)
            if mn.startswith('v_cndmask') and len(ops) == 3:
                self.rd.add(('s', 'vcc'))
        elif mn.startswith('ds_'):
            self.kind = 'ds'
            if mn.startswith(('ds_read', 'ds_bpermute', 'ds_swizzle', 'ds_permute')) or '_rtn' in mn:
                self.wr = self.R(0)
                self.rd = allr(1)
            else:
                self.rd = allr(0)
        elif mn.startswith(('buffer_', 'global_')):
            self.kind = 'vmem'
            if mn in ('buffer_wbl2', 'buffer_inv'):
                pass
            elif 'lds' in self.mods or '_lds_' in mn:
                self.rd = allr(0) | {('s', 'm0')}
            elif '_load' in mn:
                self.wr = self.R(0)
                self.rd = allr(1)
            else:
                self.rd = allr(0)
        elif mn.startswith(('s_load', 's_buffer_load', 's_memtime', 's_memrealtime')):
            self.kind = 'smem'
            self.wr = self.R(0)
            self.rd = allr(1)
        elif mn.startswith('s_atomic'):
            self.kind = 'smem'
            self.rd = allr(0)
            if 'glc' in self.mods:
                self.wr = self.R(0)
        elif mn == 's_waitcnt':
            self.kind = 'wait'
        elif mn == 's_nop':
            self.kind = 'nop'
        elif mn.startswith(('s_cbranch', 's_branch', 's_endpgm', 's_barrier', 's_sleep', 's_setprio')):
            self.kind = 'ctrl'
        elif mn.startswith(('s_cmp', 's_bitcmp')):
            self.kind = 'salu'
            self.rd = allr(0)
        elif mn.startswith('s_'):
            self.kind = 'salu'
            self.wr = self.R(0)
            self.rd = allr(1)
            if mn.startswith(('s_addk', 's_mulk', 's_cmov', 's_bitset')):
                self.rd |= self.R(0)
            if 'saveexec' in mn:
                self.wr.add(('s', 'exec'))
        else:
            raise ValueError('unknown instruction: ' + self.text)

    def wide_store_data(self):
        if self.kind == 'vmem' and '_store_dwordx' in self.mn and self.mn[-1] in '34':
            return self.R(0) if self.mn.startswith('buffer') else self.R(1)
        return set()


class Stream(list):
    def __call__(self, text, tag=None):
        for line in text.split('\n'):
            line = line.strip()
            if not line or line.startswith(';'):
                continue
            self.append(Ins(line, tag))
        return self
    def wait_vm(self, tag):
        i = Ins('@waitvm'); i.meta = tag; self.append(i)
    def wait_lgkm0(self):
        self('s_waitcnt lgkmcnt(0)')
    def skip_begin(self):
        self.append(Ins('@push'))
    def skip_end(self):
        self.append(Ins('@pop'))


def merge(main, fill, slots):
    out = Stream()
    fi = 0
    d = {}
    for idx, cnt in slots:
        d[idx] = d.get(idx, 0) + cnt
    for i, ins in enumerate(main):
        out.append(ins)
        for _ in range(d.get(i, 0)):
            if fi < len(fill):
                out.append(fill[fi]); fi += 1
    while fi < len(fill):
        out.append(fill[fi]); fi += 1
    return out


def wait_text(vm, lg):
    p = []
    if vm is not None: p.append('vmcnt(%d)' % min(vm, 63))
    if lg is not None: p.append('lgkmcnt(%d)' % min(lg, 15))
    return 's_waitcnt ' + ' '.join(p)


def insert_waits(prog):
    out = Stream()
    vm = []
    lg = []
    stack = []
    def do_wait(nvm, nlg):
        nonlocal vm, lg
        if nvm is not None and nvm >= len(vm): nvm = None
        if nlg is not None and nlg >= len(lg): nlg = None
        if nvm is None and nlg is None: return
        if nlg is not None and any(o.kind == 'smem' for o in lg): nlg = 0
        if nvm is not None: nvm = min(nvm, 63); vm = vm[len(vm) - nvm:] if nvm else []
        if nlg is not None: nlg = min(nlg, 15); lg = lg[len(lg) - nlg:] if nlg else []
        out.append(Ins(wait_text(nvm, nlg)))
    for ins in prog:
        if ins.kind == 'pseudo':
            if ins.mn == '@waitvm':
                idx = [i for i, o in enumerate(vm) if o.tag == ins.meta]
                if idx: do_wait(len(vm) - 1 - max(idx), None)
            elif ins.mn == '@push':
                stack.append((list(vm), list(lg)))
            elif ins.mn == '@pop':
                svm, slg = stack.pop()
                assert all(o in svm for o in vm), 'skippable region leaves vmem ops in flight'
                assert all(o in slg for o in lg), 'skippable region leaves lgkm ops in flight'
                vm, lg = svm, slg
            continue
        if ins.kind == 'wait':
            m = re.search(r'vmcnt\((\d+)\)', ins.text)
            if m:
                n = int(m.group(1)); vm = vm[len(vm) - n:] if n and n < len(vm) else ([] if n == 0 else vm)
            m = re.search(r'lgkmcnt\((\d+)\)', ins.text)
            if m:
                n = int(m.group(1))
                if n == 0: lg = []
                elif n < len(lg) and not any(o.kind == 'smem' for o in lg): lg = lg[len(lg) - n:]
            out.append(ins)
            continue
        touched = ins.rd | ins.wr
        nvm = nlg = None
        for i, o in enumerate(vm):
            if o.wr & touched: nvm = len(vm) - 1 - i
        for i, o in enumerate(lg):
            if o.wr & touched: nlg = len(lg) - 1 - i
            if o.kind == 'smem' and o.mn.startswith('s_atomic') and (o.rd & ins.wr): nlg = 0
        do_wait(nvm, nlg)
        out.append(ins)
        if ins.kind == 'vmem': vm.append(ins)
        if ins.kind in ('ds', 'smem'): lg.append(ins)
        if len(vm) > 63:
            pass
    return out


def states(ins):
    if ins.kind == 'label': return 0
    if ins.kind == 'nop': return int(ins.ops[0]) + 1
    return 1


def need(p, c):
    n = 0
    isv = lambda s: {r for r in s if r[0] in 'va'}
    iss = lambda s: {r for r in s if r[0] == 's'}
    if p.kind == 'valu':
        w = isv(p.wr)
        if c.kind == 'mfma' and w & c.rd: n = max(n, 2)
        if c.kind == 'valu':
            if c.mn.startswith('v_permlane') and w & c.rd: n = max(n, 2)
            if '_dpp' in c.mn and w & c.rd: n = max(n, 2)
            if c.mn.startswith(('v_readlane', 'v_readfirstlane')) and w & c.rd: n = max(n, 1)
            if p.mn.startswith(TRANS) and w & (c.rd | c.wr): n = max(n, 1)
        if p.mn.startswith(TRANS) and c.kind in ('vmem', 'ds') and w & c.rd: n = max(n, 1)
        sw = iss(p.wr)
        if sw:
            if c.kind == 'valu' and sw & c.rd: n = max(n, 4 if c.mn.startswith(('v_readlane', 'v_writelane')) else 2)
            if c.kind == 'vmem' and sw & c.rd: n = max(n, 5)
            if c.kind in ('salu', 'smem') and sw & c.rd: n = max(n, 2)
            if c.kind == 'ctrl' and 'vcc' in c.mn and ('s', 'vcc') in sw: n = max(n, 2)
    if p.kind == 'mfma':
        big = {4: 8, 8: 12}[p.passes]
        if c.kind == 'mfma':
            if p.wr & c.srcab: n = max(n, big)
            if p.wr & c.srcc:
                if not (p.wr == c.srcc and p.mn == c.mn): n = max(n, big - 2)
            elif p.wr & c.wr and not (p.wr == c.wr and p.mn == c.mn): n = max(n, big - 2)
        elif c.kind in ('valu', 'vmem', 'ds'):
            if p.wr & (c.rd | c.wr): n = max(n, big)
            if p.srcc & c.wr: n = max(n, p.passes - 1)
    if p.kind == 'salu' and ('s', 'm0') in p.wr and ('s', 'm0') in c.rd and c.kind == 'vmem': n = max(n, 1)
    if p.kind == 'salu' and ('s', 'exec') in p.wr and c.kind == 'valu' and '_dpp' in c.mn: n = max(n, 1)
    d = p.wide_store_data()
    if d and d & c.wr: n = max(n, 2)
    return n


def insert_nops(prog):
    out = Stream()
    for ins in prog:
        if ins.kind != 'label':
            gap = 0
            req = 0
            for p in reversed(out):
                if gap >= 14: break
                r = need(p, ins) - gap
                if r > req: req = r
                gap += states(p)
            if req > 0:
                out.append(Ins('s_nop %d' % (req - 1)))
        out.append(ins)
    return out


def finalize(prog):
    p = insert_nops(insert_waits(prog))
    return p

def text_of(prog):
    return '\n'.join(('' if i.kind == 'label' else '    ') + i.text for i in prog)

def v(a, n=1): return 'v%d' % a if n == 1 else 'v[%d:%d]' % (a, a + n - 1)
def a(a_, n=1): return 'a%d' % a_ if n == 1 else 'a[%d:%d]' % (a_, a_ + n - 1)
def s(a_, n=1): return 's%d' % a_ if n == 1 else 's[%d:%d]' % (a_, a_ + n - 1)
```

```python
from asmlib import *

def rest(K):
    globals().update({k: getattr(K, k) for k in dir(K) if not k.startswith('__')})
    S = K.P
    reducer(S)
    if STOP == 'o': return
    phase2(S)
    if STOP == 'h': return
    phase3(S)
    if STOP == 'act': return
    phase4(S)

aWgu, aWo = 0, 192
vL16 = 7
POLL_MAX = 20000

label_n = [0]
def lab(p):
    label_n[0] += 1
    return 'L_%s%d' % (p, label_n[0])

def signal(S, line_sreg_expr, slot_reg):
    S(f'''
    s_lshl_b32 {s(sT5)}, {s(slot_reg)}, 2
    s_add_u32 {s(sT5)}, {s(sT5)}, {s(sT4)}
    s_mov_b32 {s(sT3)}, {s(sN0)}
    s_atomic_swap {s(sT3)}, {s(SWS, 2)}, {s(sT5)}
    ''')

def poll(S, nflags):
    L = lab('poll'); E = lab('polled')
    S(f'''
    v_min_u32 {v(vT0)}, {nflags - 1}, {v(vLane)}
    v_lshlrev_b32 {v(vT0)}, 2, {v(vT0)}
    s_mov_b32 {s(sCnt)}, 0
    {L}:
    buffer_load_dword {v(vT1)}, {v(vT0)}, {srd(SWS)}, {s(sT4)} offen sc1
    s_add_u32 {s(sCnt)}, {s(sCnt)}, 1
    s_cmp_gt_u32 {s(sCnt)}, {POLL_MAX}
    s_cbranch_scc1 {E}
    s_waitcnt vmcnt(0)
    v_cmp_ne_u32 vcc, {s(sN0)}, {v(vT1)}
    s_cbranch_vccnz {L}
    {E}:
    s_waitcnt vmcnt(0) lgkmcnt(0)
    ''')

def hop(S, line_reg, line_base, slot_reg, nflags, drain_tag, do_signal=True, do_poll=True, extra=None):
    if do_signal:
        S.wait_vm(drain_tag)
        S('s_barrier')
    X = lab('nw0')
    S(f's_cmp_lg_u32 {s(sWv)}, 0\ns_cbranch_scc1 {X}')
    S.skip_begin()
    S(f's_lshl_b32 {s(sT4)}, {s(line_reg)}, 8\ns_add_u32 {s(sT4)}, {s(sT4)}, {WS_FLAG + line_base * 256}')
    if do_signal: signal(S, None, slot_reg)
    if do_poll: poll(S, nflags)
    else: S('s_waitcnt lgkmcnt(0)')
    if extra: extra(S)
    S.skip_end()
    S(f'{X}:')
    if do_poll: S('s_barrier')

vGu = 224
vTg, vTx = 227, 228
L_GU = 0
def gu_setup(S):
    S(f'''
    s_mul_i32 {s(sT0)}, {s(sJ)}, 192
    s_lshr_b32 {s(sT1)}, {s(sWv)}, 1
    s_mul_i32 {s(sT1)}, {s(sT1)}, {16 * 2752}
    s_add_u32 {s(sT0)}, {s(sT0)}, {s(sT1)}
    s_cmp_eq_u32 {s(sJ)}, 15
    s_cselect_b32 {s(sT0)}, {OOB}, {s(sT0)}
    s_movk_i32 {s(sT2)}, 0x1556
    s_movk_i32 {s(sT3)}, 2752
    ''')
    for i in range(3):
        S(f'''
        v_add_u32 {v(vT0)}, {64 * i}, {v(vLane)}
        v_mul_u32_u24 {v(vT1)}, {s(sT2)}, {v(vT0)}
        v_lshrrev_b32 {v(vT1)}, 16, {v(vT1)}        ; row = e / 12
        v_mul_u32_u24 {v(vT2)}, 12, {v(vT1)}
        v_sub_u32 {v(vT0)}, {v(vT0)}, {v(vT2)}      ; slot
        v_lshrrev_b32 {v(vT2)}, 2, {v(vT1)}
        v_and_b32 {v(vT2)}, 2, {v(vT2)}             ; 2*bit3(row)
        v_xor_b32 {v(vT0)}, {v(vT0)}, {v(vT2)}
        v_lshlrev_b32 {v(vT0)}, 4, {v(vT0)}
        v_mad_u32_u24 {v(vT0)}, {v(vT1)}, {s(sT3)}, {v(vT0)}
        v_add_u32 {v(vGu + i)}, {s(sT0)}, {v(vT0)}
        ''')
    S(f'''
    s_bitcmp1_b32 {s(sWv)}, 0
    s_cselect_b32 {s(SG)}, {s(SU)}, {s(SG)}
    s_cselect_b32 {s(SG + 1)}, {s(SU + 1)}, {s(SG + 1)}
    s_and_b32 {s(sT0)}, {s(sWv)}, 1
    s_mul_i32 {s(sT0)}, {s(sT0)}, 6144
    s_lshr_b32 {s(sT1)}, {s(sWv)}, 1
    s_mul_i32 {s(sT1)}, {s(sT1)}, 3072
    s_add_u32 {s(sGuL)}, {s(sT0)}, {s(sT1)}
    ''')
    S(f'''
    v_lshrrev_b32 {v(vT0)}, 2, {v(vL15)}           ; r
    v_lshl_add_u32 {v(vT0)}, {v(vG)}, 3, {v(vT0)}
    v_mul_u32_u24 {v(vT0)}, 192, {v(vT0)}
    v_and_b32 {v(vT1)}, 1, {v(vG)}
    v_xor_b32 {v(vT2)}, {s(sWv)}, {v(vT1)}
    v_lshl_add_u32 {v(vT2)}, {v(vT2)}, 5, {v(vT0)}
    v_and_b32 {v(vT3)}, 3, {v(vLane)}              ; c
    v_lshl_add_u32 {v(vTg)}, {v(vT3)}, 3, {v(vT2)}
    s_lshr_b32 {s(sT0)}, {s(sWv)}, 1
    s_add_u32 {s(sT0)}, {s(sT0)}, 4
    v_xor_b32 {v(vT2)}, {s(sT0)}, {v(vT1)}
    v_lshl_add_u32 {v(vT2)}, {v(vT2)}, 5, {v(vT0)}
    s_and_b32 {s(sT0)}, {s(sWv)}, 1
    s_lshl_b32 {s(sT0)}, {s(sT0)}, 4
    v_add_u32 {v(vT2)}, {s(sT0)}, {v(vT2)}
    v_lshrrev_b32 {v(vT1)}, 1, {v(vT3)}
    v_lshl_add_u32 {v(vT2)}, {v(vT1)}, 3, {v(vT2)}
    v_and_b32 {v(vT3)}, 1, {v(vT3)}
    v_mul_u32_u24 {v(vT3)}, 0x1800, {v(vT3)}
    v_add_u32 {v(vTx)}, {v(vT3)}, {v(vT2)}
    v_add_u32 {v(vTg + 2)}, 49152, {v(vTg)}
    v_add_u32 {v(vTx + 2)}, 49152, {v(vTx)}
    ''')
sGuL = 3
def gu_loads(S, batch, i):
    S(f'''
    s_add_u32 {s(sT0)}, {s(sXcd)}, {i}
    s_and_b32 {s(sT0)}, {s(sT0)}, 7
    s_mul_i32 {s(sT1)}, {s(sT0)}, 12288
    s_add_u32 {s(sT1)}, {s(sT1)}, {s(sGuL)}
    s_mul_i32 {s(sT0)}, {s(sT0)}, {32 * 2752}
    ''')
    if batch: S(f's_add_u32 {s(sT0)}, {s(sT0)}, {256 * 2752}')
    for p in range(3):
        dma(S, vGu + p, SG, s(sT0), (sT1, L_GU + p * 1024), 'gu%d' % batch)
def gu_reads(S, batch):
    for i in range(8):
        ks = 8 * batch + i
        hi = 2 * (i // 4); o = (i % 4) * 12288
        for t in range(2):
            S(f'ds_read_b64_tr_b16 {a(aWgu + 12 * ks + 2 * t, 2)}, {v(vTg + hi)} offset:{o + t * 768}')
            S(f'ds_read_b64_tr_b16 {a(aWgu + 12 * ks + 4 + 2 * t, 2)}, {v(vTg + hi)} offset:{o + 6144 + t * 768}')
            S(f'ds_read_b64_tr_b16 {a(aWgu + 12 * ks + 8 + 2 * t, 2)}, {v(vTx + hi)} offset:{o + t * 768}')

vTr = 232
def tr32_setup(S):
    S(f'''
    v_lshrrev_b32 {v(vT0)}, 2, {v(vL15)}           ; r
    v_lshrrev_b32 {v(vT1)}, 1, {v(vG)}
    v_lshl_add_u32 {v(vT1)}, {v(vT1)}, 3, {v(vT0)} ; row
    v_lshlrev_b32 {v(vT1)}, 7, {v(vT1)}
    v_lshrrev_b32 {v(vT0)}, 1, {v(vT0)}
    v_lshl_or_b32 {v(vT1)}, {v(vT0)}, 6, {v(vT1)}
    v_and_b32 {v(vT0)}, 1, {v(vG)}
    v_lshl_or_b32 {v(vT1)}, {v(vT0)}, 5, {v(vT1)}
    v_and_b32 {v(vT0)}, 3, {v(vLane)}
    v_lshl_or_b32 {v(vTr)}, {v(vT0)}, 3, {v(vT1)}
    v_xor_b32 {v(vTr + 1)}, 64, {v(vTr)}
    ''')

def reducer(S):
    kvp = 28
    zz = 60
    pq = 64
    chk = 76
    S(f'v_lshlrev_b32 {v(vL16)}, 4, {v(vLane)}')
    tr32_setup(S)
    gu_setup(S)
    for i in range(4):
        c = 12 + i
        S(f'''
        s_add_u32 {s(sT0)}, {s(sW4K)}, {L_RING + (c % NSLOT) * 16384}
        v_add_u32 {v(vT0)}, {s(sT0)}, {v(vTr)}
        v_add_u32 {v(vT1)}, {s(sT0)}, {v(vTr + 1)}
        ''')
        S.wait_vm('st%d' % c)
        for kk in range(2):
            for nt in range(2):
                for t in range(2):
                    S(f'ds_read_b64_tr_b16 {a(aWo + 8 * (2 * i + kk) + 4 * nt + 2 * t, 2)}, {v(vT0 + nt)} offset:{kk * 2048 + t * 512}')
    S(f'''
    s_lshl_b32 {s(sT0)}, {s(sIdx)}, 5
    s_lshl_b32 {s(sT1)}, {s(sWv)}, 3
    s_add_u32 {s(sT0)}, {s(sT0)}, {s(sT1)}         ; head*32 + 8w
    s_lshl_b32 {s(sT1)}, {s(sT0)}, 10
    s_add_u32 {s(sT1)}, {s(sT1)}, {WS_KV}
    s_add_u32 {s(sT2)}, {s(sT1)}, 4096
    s_lshl_b32 {s(sT3)}, {s(sT0)}, 7
    s_add_u32 {s(sT3)}, {s(sT3)}, {WS_Z}
    s_lshl_b32 {s(sT4)}, {s(sXcd)}, 2
    s_add_u32 {s(sT4)}, {s(sT4)}, {s(sWv)}
    s_lshl_b32 {s(sT4)}, {s(sT4)}, 5
    s_add_u32 {s(sT4)}, {s(sT4)}, {s(sIdx)}
    s_mul_i32 {s(sT5)}, {s(sT4)}, 3072
    s_add_u32 {s(sT5)}, {s(sT5)}, {WS_PQ}
    v_and_b32 {v(vT2)}, 7, {v(vLane)}
    v_lshlrev_b32 {v(vT2)}, 7, {v(vT2)}
    v_lshl_or_b32 {v(vT2)}, {v(vG)}, 4, {v(vT2)}
    s_mov_b32 {s(sCnt)}, 0
    s_waitcnt vmcnt(0) lgkmcnt(0)
    ''')
    L = lab('kv'); E = lab('kvok')
    S(f'{L}:')
    for p in range(8):
        S(f'buffer_load_dwordx4 {v(kvp + 4 * p, 4)}, {v(vL16)}, {srd(SWS)}, {s(sT1 if p < 4 else sT2)} offen offset:{(p % 4) * 1024} sc1')
    S(f'buffer_load_dwordx4 {v(zz, 4)}, {v(vT2)}, {srd(SWS)}, {s(sT3)} offen sc1')
    for i in range(3):
        S(f'buffer_load_dwordx4 {v(pq + 4 * i, 4)}, {v(vL16)}, {srd(SWS)}, {s(sT5)} offen offset:{i * 1024} sc1')
    ns = (sN0, sN1, sN2, sN3)
    for e in range(36):
        S(f'v_bitop3_b32 {v(kvp + e)}, {v(kvp + e)}, {v(vFF)}, {s(ns[e % 4])} bitop3:0x78')
        if e == 1: S(f'v_or_b32 {v(chk)}, {v(kvp)}, {v(kvp + 1)}')
        elif e % 2: S(f'v_or3_b32 {v(chk)}, {v(chk)}, {v(kvp + e - 1)}, {v(kvp + e)}')
    S(f'v_and_b32 {v(chk)}, 0xff, {v(chk)}')
    for i in range(3):
        S(f'v_bitop3_b32 {v(chk)}, {v(chk)}, {v(pq + 4 * i + 3)}, {s(sN0)} bitop3:0xf6')
    S(f'''
    s_add_u32 {s(sCnt)}, {s(sCnt)}, 1
    s_cmp_gt_u32 {s(sCnt)}, {POLL_MAX}
    s_cbranch_scc1 {E}
    v_cmp_ne_u32 vcc, 0, {v(chk)}
    s_cbranch_vccnz {L}
    {E}:
    ''')
    stamp(S)
    for h in (16, 8, 4):
        for e in range(0, h, 2):
            S(f'v_pk_add_f32 {v(kvp + e, 2)}, {v(kvp + e, 2)}, {v(kvp + h + e, 2)}')
    for ctl in ('quad_perm:[1,0,3,2]', 'quad_perm:[2,3,0,1]', 'row_ror:4'):
        for e in range(4):
            S(f'v_add_f32_dpp {v(zz + e)}, {v(zz + e)}, {v(zz + e)} {ctl} row_mask:0xf bank_mask:0xf')
    S(f'''
    s_lshl_b32 {s(sT0)}, {s(sWv)}, 11
    s_add_u32 {s(sT0)}, {s(sT0)}, {L_KVRED}
    v_add_u32 {v(vT0)}, {s(sT0)}, {v(vL16)}
    v_add_u32 {v(vT1)}, {L_KVRED}, {v(vL16)}
    ds_write_b128 {v(vT0)}, {v(kvp, 4)}
    ds_write_b128 {v(vT0)}, {v(zz, 4)} offset:1024
    v_mov_b32 {v(pq + 11)}, {v(pq + 6)}
    v_mov_b32 {v(pq + 10)}, {v(pq + 2)}
    s_waitcnt lgkmcnt(0)
    s_barrier
    ''')
    for e in range(8):
        S(f'ds_read_b128 {v(kvp + 4 * e, 4)}, {v(vT1)} offset:{e * 1024}')
    for h in (16, 8):
        for e in range(0, h, 2):
            S(f'v_pk_add_f32 {v(kvp + e, 2)}, {v(kvp + e, 2)}, {v(kvp + h + e, 2)}')
    kA, zA = zz, zz + 2
    S(f'''
    v_cvt_pk_bf16_f32 {v(kA)}, {v(kvp)}, {v(kvp + 1)}
    v_cvt_pk_bf16_f32 {v(kA + 1)}, {v(kvp + 2)}, {v(kvp + 3)}
    v_cvt_pk_bf16_f32 {v(zA)}, {v(kvp + 4)}, {v(kvp + 5)}
    v_cvt_pk_bf16_f32 {v(zA + 1)}, {v(kvp + 6)}, {v(kvp + 7)}
    ''')
    num, den = 76, 92
    pqr = (pq, pq + 4, pq + 8, pq + 10)
    for t in range(4):
        S(f'v_mfma_f32_16x16x16_bf16 {v(den + 4 * t, 4)}, {v(zA, 2)}, {v(pqr[t], 2)}, 0')
    for t in range(4):
        S(f'v_mfma_f32_16x16x16_bf16 {v(num + 4 * t, 4)}, {v(kA, 2)}, {v(pqr[t], 2)}, 0')
    S(f's_lshl_b32 {s(sT4)}, {s(sT4)}, 11\ns_add_u32 {s(sT4)}, {s(sT4)}, {WS_O}')
    for t in range(4):
        S(f'v_add_f32 {v(den + 4 * t)}, 0x358637bd, {v(den + 4 * t)}')
    for t in range(4):
        S(f'v_rcp_f32 {v(den + 4 * t)}, {v(den + 4 * t)}')
    o = kvp
    for t in range(4):
        for r in range(4):
            S(f'v_mul_f32 {v(num + 4 * t + r)}, {v(den + 4 * t)}, {v(num + 4 * t + r)}')
        S(f'v_cvt_pk_bf16_f32 {v(o + 2 * t)}, {v(num + 4 * t)}, {v(num + 4 * t + 1)}')
        S(f'v_cvt_pk_bf16_f32 {v(o + 2 * t + 1)}, {v(num + 4 * t + 2)}, {v(num + 4 * t + 3)}')
    for st in range(2):
        S(f'v_permlane16_swap_b32 {v(o + 4 * st)}, {v(o + 4 * st + 2)}')
        S(f'v_permlane16_swap_b32 {v(o + 4 * st + 1)}, {v(o + 4 * st + 3)}')
    for st in range(2):
        S(f'buffer_store_dwordx4 {v(o + 4 * st, 4)}, {v(vL16)}, {srd(SWS)}, {s(sT4)} offen offset:{st * 1024} sc1', 'ost')
    stamp(S)

L_RED = 98304
vRw, vRr = 234, 235
def red_setup(S):
    S(f'''
    v_and_b32 {v(vT0)}, 31, {v(vLane)}
    v_lshrrev_b32 {v(vT1)}, 5, {v(vLane)}
    v_and_b32 {v(vT2)}, 7, {v(vLane)}
    v_xor_b32 {v(vT1)}, {v(vT1)}, {v(vT2)}
    v_lshlrev_b32 {v(vT1)}, 4, {v(vT1)}
    v_lshl_or_b32 {v(vT1)}, {v(vT0)}, 8, {v(vT1)}
    s_lshl_b32 {s(sT0)}, {s(sWv)}, 13
    s_add_u32 {s(sT0)}, {s(sT0)}, {L_RED}
    v_add_u32 {v(vRw)}, {s(sT0)}, {v(vT1)}
    v_lshrrev_b32 {v(vT0)}, 3, {v(vLane)}
    v_lshlrev_b32 {v(vT2)}, 1, {v(vT2)}
    v_xor_b32 {v(vT2)}, {v(vT2)}, {v(vT0)}
    v_lshlrev_b32 {v(vT2)}, 4, {v(vT2)}
    v_lshl_or_b32 {v(vT2)}, {v(vT0)}, 8, {v(vT2)}
    s_lshl_b32 {s(sT0)}, {s(sWv)}, 11
    s_add_u32 {s(sT0)}, {s(sT0)}, {L_RED}
    v_add_u32 {v(vRr)}, {s(sT0)}, {v(vT2)}
    ''')
def red_write(S, acc, st):
    for i in range(4):
        if i: S(f'v_xor_b32 {v(vT0 + i)}, {32 * i}, {v(vRw)}')
    for nt in range(2):
        for i in range(4):
            S(f'ds_write_b128 {v(vT0 + i) if i else v(vRw)}, {v(acc + 16 * nt + 4 * i, 4)} offset:{st * 32768 + nt * 128}')
def red_read(S, dst, st):
    S(f'v_xor_b32 {v(vT0)}, 16, {v(vRr)}')
    for w in range(4):
        S(f'ds_read_b128 {v(dst + 8 * w, 4)}, {v(vRr)} offset:{st * 32768 + w * 8192}')
        S(f'ds_read_b128 {v(dst + 8 * w + 4, 4)}, {v(vT0)} offset:{st * 32768 + w * 8192}')
    for h in (16, 8):
        for e in range(0, h, 2):
            S(f'v_pk_add_f32 {v(dst + e, 2)}, {v(dst + e, 2)}, {v(dst + h + e, 2)}')
def add_res(S, d, res, t):
    for e in range(4):
        S(f'v_lshlrev_b32 {v(t + 2 * e)}, 16, {v(res + e)}')
        S(f'v_and_b32 {v(t + 2 * e + 1)}, 0xffff0000, {v(res + e)}')
    for e in range(0, 8, 2):
        S(f'v_pk_add_f32 {v(d + e, 2)}, {v(d + e, 2)}, {v(t + e, 2)}')
    for e in range(4):
        S(f'v_cvt_pk_bf16_f32 {v(res + e)}, {v(d + 2 * e)}, {v(d + 2 * e + 1)}')

def phase2(S):
    for i in range(8): gu_loads(S, 0, i)
    red_setup(S)
    def bump(S):
        X = lab('nn')
        S(f'''
        s_cmp_lg_u32 s2, 0
        s_cbranch_scc1 {X}
        v_mov_b32 {v(vT0)}, 0
        v_mov_b32 {v(vT1)}, {s(sN0)}
        buffer_store_dword {v(vT1)}, {v(vT0)}, {srd(SWS)}, 0 offen sc1
        s_waitcnt vmcnt(0)
        {X}:
        ''')
    hop(S, sXcd, 0, sIdx, 32, 'ost', extra=bump)
    stamp(S)
    of, acc = 28, 92
    S(f'''
    s_lshl_b32 {s(sT0)}, {s(sRt)}, 5
    s_lshl_b32 {s(sT1)}, {s(sWv)}, 3
    s_add_u32 {s(sT0)}, {s(sT0)}, {s(sT1)}
    s_lshl_b32 {s(sT0)}, {s(sT0)}, 11
    s_add_u32 {s(sT0)}, {s(sT0)}, {WS_O}
    s_add_u32 {s(sT1)}, {s(sT0)}, 4096
    s_add_u32 {s(sT2)}, {s(sT0)}, 8192
    s_add_u32 {s(sT3)}, {s(sT0)}, 12288
    ''')
    for st in range(2):
        for hh in range(8):
            S(f'buffer_load_dwordx4 {v(of + 32 * st + 4 * hh, 4)}, {v(vL16)}, {srd(SWS)}, {s(sT0 + hh // 2)} offen offset:{(hh % 2) * 2048 + st * 1024} sc1')
    S.wait_vm('gu0')
    S('s_barrier')
    gu_reads(S, 0)
    for st in range(2):
        for hh in range(8):
            for nt in range(2):
                d = acc + 32 * st + 16 * nt
                S(f'v_mfma_f32_32x32x16_bf16 {v(d, 16)}, {a(aWo + 8 * hh + 4 * nt, 4)}, {v(of + 32 * st + 4 * hh, 4)}, {"0" if hh == 0 else v(d, 16)}')
        red_write(S, acc + 32 * st, st)
    S('s_waitcnt lgkmcnt(0)\ns_barrier')
    stamp(S)
    vH, vSt = 12, 13
    S(f'''
    s_lshl_b32 {s(sT0)}, {s(sRb)}, 3
    s_and_b32 {s(sT1)}, {s(sRt)}, 1
    s_lshl_b32 {s(sT2)}, {s(sT1)}, 1
    s_add_u32 {s(sT0)}, {s(sT0)}, {s(sT2)}
    s_lshr_b32 {s(sT2)}, {s(sWv)}, 1
    s_add_u32 {s(sT0)}, {s(sT0)}, {s(sT2)}
    s_lshl_b32 {s(sT0)}, {s(sT0)}, 3
    s_add_u32 {s(sT0)}, {s(sT0)}, {s(sCg)}
    s_lshl_b32 {s(sT0)}, {s(sT0)}, 11
    s_and_b32 {s(sT2)}, {s(sWv)}, 1
    s_lshl_b32 {s(sT2)}, {s(sT2)}, 7
    s_add_u32 {s(sT0)}, {s(sT0)}, {s(sT2)}
    s_add_u32 {s(sT4)}, {s(sT0)}, {WS_H}
    s_add_u32 {s(sT5)}, {s(sT4)}, 65536
    v_and_b32 {v(vT1)}, 7, {v(vLane)}
    v_lshrrev_b32 {v(vT2)}, 3, {v(vLane)}
    v_lshlrev_b32 {v(vH)}, 8, {v(vT1)}
    v_lshl_or_b32 {v(vH)}, {v(vT2)}, 4, {v(vH)}
    s_lshl_b32 {s(sT0)}, {s(sRb)}, 3
    s_add_u32 {s(sT0)}, {s(sT0)}, {s(sCg)}
    s_lshl_b32 {s(sT0)}, {s(sT0)}, 10
    s_lshl_b32 {s(sT1)}, {s(sT1)}, 8
    s_add_u32 {s(sT0)}, {s(sT0)}, {s(sT1)}
    s_lshl_b32 {s(sT1)}, {s(sWv)}, 6
    s_add_u32 {s(sT0)}, {s(sT0)}, {s(sT1)}
    s_add_u32 {s(sT3)}, {s(sT0)}, {WS_ST}
    v_lshlrev_b32 {v(vSt)}, 3, {v(vT2)}
    ''')
    for st in range(2):
        d = of + 32 * st
        red_read(S, d, st)
        add_res(S, d, vXres + 4 * st, d + 8)
        S(f'buffer_store_dwordx4 {v(vXres + 4 * st, 4)}, {v(vH)}, {srd(SWS)}, {s(sT4 + st)} offen sc1', 'hst')
        sm = d + 16
        S(f'v_mov_b32 {v(sm)}, 0\nv_mov_b32 {v(sm + 1)}, 0')
        for e in range(4):
            S(f'v_dot2_f32_bf16 {v(sm)}, {v(vXres + 4 * st + e)}, {v(vOnes)}, {v(sm)}')
            S(f'v_dot2_f32_bf16 {v(sm + 1)}, {v(vXres + 4 * st + e)}, {v(vXres + 4 * st + e)}, {v(sm + 1)}')
        S('s_nop 3')
        for ctl in ('quad_perm:[1,0,3,2]', 'quad_perm:[2,3,0,1]', 'row_half_mirror'):
            for e in range(2):
                S(f'v_add_f32_dpp {v(sm + e)}, {v(sm + e)}, {v(sm + e)} {ctl} row_mask:0xf bank_mask:0xf')
        S('s_mov_b32 exec_lo, 0x01010101\ns_mov_b32 exec_hi, 0x01010101')
        S(f'buffer_store_dwordx2 {v(sm, 2)}, {v(vSt)}, {srd(SWS)}, {s(sT3)} offen offset:{st * 512} sc1', 'hst')
        S('s_mov_b64 exec, -1')
    stamp(S)

L_H = 0
L_STAT2 = 131072
L_WD = 135168
vWdV = 100
def wd_reg(i, nt):
    return a(aWo + 8 * i + 4 * nt, 4) if i < 8 else v(vWdV + 8 * (i - 8) + 4 * nt, 4)
def wd_reg2(i, nt, t):
    return a(aWo + 8 * i + 4 * nt + 2 * t, 2) if i < 8 else v(vWdV + 8 * (i - 8) + 4 * nt + 2 * t, 2)

def phase3(S):
    for i in range(8): gu_loads(S, 1, i)
    hop(S, sRb, 8, sJ, 16, 'hst', do_poll=False)
    S.wait_vm('gu1')
    S('s_barrier')
    gu_reads(S, 1)
    cs = 28
    for ks in range(16):
        for t in range(3):
            S(f'v_mfma_f32_16x16x32_bf16 {v(cs + 4 * t, 4)}, {a(aWgu + 12 * ks + 4 * t, 4)}, {v(vOnes, 4)}, {"0" if ks == 0 else v(cs + 4 * t, 4)}')
    S(f'''
    v_permlane16_swap_b32 {v(cs + 8)}, {v(cs + 10)}
    v_permlane16_swap_b32 {v(cs + 9)}, {v(cs + 11)}
    ''')
    hop(S, sRb, 8, sJ, 16, None, do_signal=False)
    stamp(S)
    sH = 4
    S(f'''
    s_lshl_b32 {s(sH)}, {s(sRb)}, 17
    s_add_u32 {s(sH)}, {s(sH)}, {WS_H}
    s_add_u32 {s(sH)}, {s(sH)}, {s(sW4K)}
    s_cmp_eq_u32 {s(sJ)}, 15
    s_cselect_b32 {s(sH)}, {OOB}, {s(sH)}
    ''')
    def h_loads(T, mt):
        T(f's_add_u32 m0, {s(sW4K)}, {L_H + mt * 16384}')
        T(f's_add_u32 {s(sT0)}, {s(sH)}, {mt * 16384}')
        for p in range(4):
            T(f'buffer_load_dwordx4 {v(vL16)}, {srd(SWS)}, {s(sT0)} offen offset:{p * 1024} sc1 lds', 'h%d' % mt)
    h_loads(S, 0)
    stt = 40
    S(f'''
    s_lshl_b32 {s(sT0)}, {s(sRb)}, 13
    s_lshl_b32 {s(sT1)}, {s(sWv)}, 8
    s_add_u32 {s(sT0)}, {s(sT0)}, {s(sT1)}
    s_add_u32 {s(sT0)}, {s(sT0)}, {WS_ST}
    v_and_b32 {v(vT0)}, 31, {v(vLane)}
    v_lshrrev_b32 {v(vT1)}, 5, {v(vLane)}
    v_lshlrev_b32 {v(vT1)}, 12, {v(vT1)}
    v_lshl_or_b32 {v(vT1)}, {v(vT0)}, 3, {v(vT1)}
    ''')
    for i in range(4):
        S(f'buffer_load_dwordx2 {v(stt + 2 * i, 2)}, {v(vT1)}, {srd(SWS)}, {s(sT0)} offen offset:{i * 1024} sc1')
    for mt in range(1, 8): h_loads(S, mt)
    S(f'''
    v_pk_add_f32 {v(stt, 2)}, {v(stt, 2)}, {v(stt + 2, 2)}
    v_pk_add_f32 {v(stt + 4, 2)}, {v(stt + 4, 2)}, {v(stt + 6, 2)}
    v_pk_add_f32 {v(stt, 2)}, {v(stt, 2)}, {v(stt + 4, 2)}
    v_mov_b32 {v(stt + 2)}, {v(stt)}
    v_mov_b32 {v(stt + 3)}, {v(stt + 1)}
    v_permlane32_swap_b32 {v(stt)}, {v(stt + 2)}
    v_permlane32_swap_b32 {v(stt + 1)}, {v(stt + 3)}
    v_pk_add_f32 {v(stt, 2)}, {v(stt, 2)}, {v(stt + 2, 2)}
    v_mul_f32 {v(stt)}, 0x3b000000, {v(stt)}       ; mean
    v_mul_f32 {v(stt + 3)}, {v(stt)}, {v(stt)}
    s_mov_b32 {s(sT1)}, 0x3b000000
    v_fma_f32 {v(stt + 2)}, {v(stt + 1)}, {s(sT1)}, -{v(stt + 3)}
    v_max_f32 {v(stt + 2)}, 0, {v(stt + 2)}
    v_add_f32 {v(stt + 2)}, 0x3727c5ac, {v(stt + 2)}
    v_rsq_f32 {v(stt + 1)}, {v(stt + 2)}
    v_mul_f32 {v(stt + 1)}, 0xbfb8aa3b, {v(stt + 1)}
    s_lshl_b32 {s(sT1)}, {s(sWv)}, 9
    s_add_u32 {s(sT1)}, {s(sT1)}, {L_STAT2}
    v_lshl_add_u32 {v(vT0)}, {v(vT0)}, 4, {s(sT1)}
    ds_write_b128 {v(vT0)}, {v(stt, 4)}
    ''')
    vHr, vHr2, vSr, vEx = 12, 13, 14, 15
    sA0, sA1 = 5, 6
    S(f'''
    v_add_u32 {v(vHr2)}, 0x10000, {v(vL16)}
    v_lshlrev_b32 {v(vSr)}, 4, {v(vL15)}
    v_add_u32 {v(vSr)}, {L_STAT2}, {v(vSr)}
    s_mul_i32 {s(sT0)}, {s(sRb)}, {4 * 86 * 1024}
    s_add_u32 {s(sT0)}, {s(sT0)}, {WS_ACT}
    s_mul_i32 {s(sT1)}, {s(sJ)}, 6
    s_add_u32 {s(sT2)}, {s(sT1)}, {s(sWv)}
    s_lshl_b32 {s(sT3)}, {s(sT2)}, 10
    s_add_u32 {s(sA0)}, {s(sT0)}, {s(sT3)}
    s_cmp_ge_u32 {s(sT2)}, 86
    s_cselect_b32 {s(sA0)}, {OOB}, {s(sA0)}
    s_add_u32 {s(sT1)}, {s(sT1)}, 4
    s_lshl_b32 {s(sT3)}, {s(sT1)}, 10
    s_lshl_b32 {s(sT4)}, {s(sWv)}, 9
    s_add_u32 {s(sT3)}, {s(sT3)}, {s(sT4)}
    s_add_u32 {s(sA1)}, {s(sT0)}, {s(sT3)}
    s_cmp_ge_u32 {s(sT1)}, 86
    s_cselect_b32 {s(sA1)}, {OOB}, {s(sA1)}
    v_and_b32 {v(vT0)}, 31, {v(vLane)}
    v_lshrrev_b32 {v(vT1)}, 5, {v(vLane)}
    v_mul_u32_u24 {v(vT1)}, {2 * 86 * 1024}, {v(vT1)}
    v_lshl_add_u32 {v(vEx)}, {v(vT0)}, 4, {v(vT1)}
    ''')
    vWd, vWr = 16, 18
    sWdl = 7
    S(f'''
    s_mul_i32 {s(sWdl)}, {s(sWv)}, 6144
    s_add_u32 {s(sWdl)}, {s(sWdl)}, {L_WD}
    v_add_u32 {v(vWr)}, {s(sWdl)}, {v(vTr)}
    v_add_u32 {v(vWr + 1)}, {s(sWdl)}, {v(vTr + 1)}
    s_mul_i32 {s(sT0)}, {s(sWv)}, {(128 - 16) * 1024}
    v_subrev_u32 {v(vWd)}, {s(sT0)}, {v(vWo)}      ; rows 16w + r
    v_add_u32 {v(vWd + 1)}, {8192 - 1024}, {v(vWd)}
    ''')
    def wd_load(T, i):
        T(f's_add_u32 m0, {s(sWdl)}, {(i % 3) * 2048}')
        T(f's_mov_b32 {s(sT1)}, {i * 65536}')
        T(f'buffer_load_dwordx4 {v(vWd)}, {srd(SD)}, {s(sT1)} offen lds', 'wd%d' % i)
        T(f'buffer_load_dwordx4 {v(vWd + 1)}, {srd(SD)}, {s(sT1)} offen offset:1024 lds', 'wd%d' % i)
    def wd_read(T, i):
        T.wait_vm('wd%d' % i)
        for nt in range(2):
            for t in range(2):
                T(f'ds_read_b64_tr_b16 {wd_reg2(i, nt, t)}, {v(vWr + nt)} offset:{(i % 3) * 2048 + t * 512}')
    acc = 48
    hf = 72
    sr = 88
    pm = 92
    pe = 96
    tmp = 212
    def epi(T, mt):
        A = acc + 12 * (mt % 2)
        T(f'ds_read_b128 {v(sr, 4)}, {v(vSr)} offset:{mt * 256}')
        T(f'v_permlane16_swap_b32 {v(A + 8)}, {v(A + 10)}')
        T(f'v_permlane16_swap_b32 {v(A + 9)}, {v(A + 11)}')
        pairs = [(r, 4 + r) for r in range(4)] + [(8, 10), (9, 11)]
        for e in range(12):
            T(f'v_fma_f32 {v(A + e)}, -{v(sr)}, {v(cs + e)}, {v(A + e)}')
        for n, (g_, u_) in enumerate(pairs):
            T(f'v_mul_f32 {v(tmp + n)}, {v(sr + 1)}, {v(A + g_)}')
        for n, (g_, u_) in enumerate(pairs):
            T(f'v_exp_f32 {v(tmp + n)}, {v(tmp + n)}')
            T(f'v_mul_f32 {v(A + g_)}, {v(A + g_)}, {v(A + u_)}')
        for n in range(6):
            T(f'v_fma_f32 {v(tmp + n)}, {v(tmp + n)}, {v(sr + 2)}, {v(sr + 2)}')
        for n in range(6):
            T(f'v_rcp_f32 {v(tmp + n)}, {v(tmp + n)}')
        for n, (g_, u_) in enumerate(pairs):
            T(f'v_mul_f32 {v(A + g_)}, {v(A + g_)}, {v(tmp + n)}')
        q = mt % 2
        T(f'v_cvt_pk_bf16_f32 {v(pm + 2 * q)}, {v(A)}, {v(A + 1)}')
        T(f'v_cvt_pk_bf16_f32 {v(pm + 2 * q + 1)}, {v(A + 2)}, {v(A + 3)}')
        T(f'v_cvt_pk_bf16_f32 {v(pe + mt % 4)}, {v(A + 8)}, {v(A + 9)}')
        st = mt // 4; rl = (mt // 2) % 2
        if q == 1:
            T(f's_add_u32 {s(sT2)}, {s(sA0)}, {(2 * rl + st) * 86 * 1024}')
            T(f'v_permlane16_swap_b32 {v(pm)}, {v(pm + 2)}')
            T(f'v_permlane16_swap_b32 {v(pm + 1)}, {v(pm + 3)}')
            T(f'buffer_store_dwordx4 {v(pm, 4)}, {v(vL16)}, {srd(SWS)}, {s(sT2)} offen sc1', 'act%d' % st)
        if mt % 4 == 3:
            T(f's_add_u32 {s(sT2)}, {s(sA1)}, {st * 86 * 1024}')
            T(f'v_permlane16_swap_b32 {v(pe)}, {v(pe + 1)}')
            T(f'v_permlane16_swap_b32 {v(pe + 2)}, {v(pe + 3)}')
            T(f'v_permlane32_swap_b32 {v(pe)}, {v(pe + 2)}')
            T(f'v_permlane32_swap_b32 {v(pe + 1)}, {v(pe + 3)}')
            T(f'buffer_store_dwordx4 {v(pe, 4)}, {v(vEx)}, {srd(SWS)}, {s(sT2)} offen sc1', 'act%d' % st)
    def hread(T, n):
        mt, ks = n // 16, n % 16
        o = mt * 16384 + ks * 1024
        T(f'ds_read_b128 {v(hf + 4 * (n % 4), 4)}, {v(vL16) if o < 65536 else v(vHr2)} offset:{o % 65536}')
    S.wait_vm('h7')
    S('s_waitcnt lgkmcnt(0)\ns_barrier')
    stamp(S)
    for n in range(3): hread(S, n)
    wl = 0; wr = 0
    for mt in range(8):
        M = Stream()
        A = acc + 12 * (mt % 2)
        pos = []
        for ks in range(16):
            n = mt * 16 + ks
            for t in range(3):
                M(f'v_mfma_f32_16x16x32_bf16 {v(A + 4 * t, 4)}, {a(aWgu + 12 * ks + 4 * t, 4)}, {v(hf + 4 * (n % 4), 4)}, {"0" if ks == 0 else v(A + 4 * t, 4)}')
                if t == 0 and n + 3 < 128: hread(M, n + 3)
                else: pos.append(len(M) - 1)
        F = Stream()
        for _ in range(3):
            if wl - wr >= 2 or (wl == 22 and wr < 22):
                wd_read(F, wr); wr += 1
            if wl < 22:
                wd_load(F, wl); wl += 1
        if mt:
            E = Stream(); epi(E, mt - 1)
            F = merge(E, F, [(k, 1) for k in range(2, len(E), 2)])
        if mt == 5:
            pass
        skip = 2 if mt else 0
        per = -(-len(F) // (len(pos) - skip))
        S.extend(merge(M, F, [(p, per) for p in pos[skip:]]))
        if mt == 5:
            hop(S, sRb, 24, sJ, 15, 'act0', do_poll=False)
    while wr < 22:
        wd_read(S, wr); wr += 1
    epi(S, 7)
    stamp(S)

def phase4(S):
    af = 0
    acc = 28
    S(f'''
    s_mul_i32 {s(sT0)}, {s(sRt)}, {2 * 86 * 1024}
    s_add_u32 {s(sT0)}, {s(sT0)}, {WS_ACT}
    s_add_u32 {s(4)}, {s(sT0)}, {s(sW1K)}
    ''')
    def loads(st):
        for i in range(22):
            S(f's_add_u32 {s(sT0)}, {s(4)}, {st * 86 * 1024 + i * 4096}')
            if i == 21:
                S(f's_cmp_ge_u32 {s(sWv)}, 2\ns_cselect_b32 {s(sT0)}, {OOB}, {s(sT0)}')
            S(f'buffer_load_dwordx4 {a(af + 88 * st + 4 * i, 4)}, {v(vL16)}, {srd(SWS)}, {s(sT0)} offen sc1')
    def mms(st):
        for i in range(22):
            for nt in range(2):
                d = acc + 32 * st + 16 * nt
                S(f'v_mfma_f32_32x32x16_bf16 {v(d, 16)}, {wd_reg(i, nt)}, {a(af + 88 * st + 4 * i, 4)}, {"0" if i == 0 else v(d, 16)}')
    hop(S, sRb, 40, sJ, 15, 'act1', do_poll=False)
    hop(S, sRb, 24, sJ, 15, None, do_signal=False)
    loads(0)
    mms(0)
    red_write(S, acc, 0)
    hop(S, sRb, 40, sJ, 15, None, do_signal=False)
    stamp(S)
    loads(1)
    mms(1)
    red_write(S, acc + 32, 1)
    S('s_waitcnt lgkmcnt(0)\ns_barrier')
    stamp(S)
    vO = 12
    S(f'''
    s_lshl_b32 {s(sT0)}, {s(sRt)}, 6
    s_lshl_b32 {s(sT1)}, {s(sWv)}, 3
    s_add_u32 {s(sT0)}, {s(sT0)}, {s(sT1)}
    s_lshl_b32 {s(sT0)}, {s(sT0)}, 10
    s_lshl_b32 {s(sT1)}, {s(sCg)}, 7
    s_add_u32 {s(sT4)}, {s(sT0)}, {s(sT1)}
    s_add_u32 {s(sT5)}, {s(sT4)}, 32768
    v_and_b32 {v(vT1)}, 7, {v(vLane)}
    v_lshrrev_b32 {v(vT2)}, 3, {v(vLane)}
    v_lshlrev_b32 {v(vO)}, 4, {v(vT1)}
    v_lshl_or_b32 {v(vO)}, {v(vT2)}, 10, {v(vO)}
    ''')
    for st in range(2):
        d = 100 + 32 * st
        red_read(S, d, st)
        add_res(S, d, vXres + 4 * st, d + 8)
        S(f'buffer_store_dwordx4 {v(vXres + 4 * st, 4)}, {v(vO)}, {srd(SOUT)}, {s(sT4 + st)} offen')
```

```python
import sys
from asmlib import *

NAME = 'sequential_preLN__linear_attn_block__swiglu_ffn__prompt_kernel'
STAMPS = '--stamps' in sys.argv
STOP = None
for x in sys.argv:
    if x.startswith('--stop='): STOP = x.split('=')[1]

WS_FLAG = 0x1000
WS_Z    = 0x20000
WS_ST   = 0x40000
WS_STAMP= 0x80000
WS_KV   = 0x100000
WS_PQ   = 0x200000
WS_O    = 0x500000
WS_H    = 0x700000
WS_ACT  = 0x900000
WS_SIZE = 0xE60000
OOB     = 0x7F000000

SX, SW, SO, SG, SU, SD, SOUT, SWS = 8, 12, 16, 20, 24, 28, 32, 36
sXcd, sIdx, sRq, sCg, sRt, sRb, sJ, sWv, sC0 = 40, 41, 42, 43, 44, 45, 46, 47, 48
sN0, sN1, sN2, sN3 = 49, 50, 51, 52
sT0, sT1, sT2, sT3, sT4, sT5 = 53, 54, 55, 56, 57, 58
sW1K, sW4K = 59, 60
sCnt = 61
sTP = 62
sStamp = 64
srd = lambda r: s(r, 4)

L_X = 0
L_RING = 65536
NSLOT = 5
L_MISC = L_RING + NSLOT * 16384
L_STAT1 = L_MISC
L_KVRED = L_MISC + 1024
LDS_BYTES = 163840

P = Stream()
nstamp = [0]
def stamp(S=None):
    S = P if S is None else S
    if STAMPS:
        S('s_memrealtime %s' % s(sStamp + 2 * nstamp[0], 2))
        S('s_waitcnt lgkmcnt(0)')
        nstamp[0] += 1
        assert nstamp[0] <= 18

def dma(S, vaddr, srdreg, soff, ldsaddr_expr, tag, mods=''):
    r, n = ldsaddr_expr
    if r is None: S('s_mov_b32 m0, %d' % n)
    else: S('s_add_u32 m0, %s, %d' % (s(r), n))
    S('buffer_load_dwordx4 %s, %s, %s offen %s lds' % (v(vaddr), srd(srdreg), soff, mods), tag)

vLane, vG, vL15 = 1, 2, 3
vX, vW, vWo = 4, 5, 6
vT0, vT1, vT2, vT3 = 8, 9, 10, 11
def prologue():
    S = P
    S('s_cmp_ge_u32 s2, 256\ns_cbranch_scc1 L_end')
    for r, off in ((SX, 0), (SW, 8), (SWS, 72), (SO, 16), (SG, 32), (SU, 40), (SD, 48), (SOUT, 56)):
        S('s_load_dwordx2 %s, s[0:1], %d' % (s(r, 2), off))
    if STAMPS:
        S('s_memrealtime %s' % s(sStamp, 2)); nstamp[0] = 1
    S(f'''
    v_lshrrev_b32 {v(vT0)}, 6, v0
    v_and_b32 {v(vLane)}, 63, v0
    v_readfirstlane_b32 {s(sWv)}, {v(vT0)}
    s_and_b32 {s(sXcd)}, s2, 7
    s_lshr_b32 {s(sIdx)}, s2, 3
    s_lshr_b32 {s(sRq)}, s2, 6
    s_and_b32 {s(sCg)}, {s(sIdx)}, 7
    s_lshl_b32 {s(sT0)}, {s(sXcd)}, 2
    s_add_u32 {s(sRt)}, {s(sT0)}, {s(sRq)}
    s_lshr_b32 {s(sRb)}, {s(sRt)}, 1
    s_and_b32 {s(sJ)}, {s(sIdx)}, 15
    s_mov_b32 {s(sC0)}, {s(sXcd)}
    s_lshl_b32 {s(sW1K)}, {s(sWv)}, 10
    s_lshl_b32 {s(sW4K)}, {s(sWv)}, 12
    ''')
    for r, n in ((SX, 2048 * 1024), (SW, 512 * 3072), (SWS, WS_SIZE), (SO, 512 * 1024), (SG, 512 * 2752), (SU, 512 * 2752),
                 (SD, 1376 * 1024), (SOUT, 2048 * 1024)):
        S('s_mov_b32 %s, %d\ns_mov_b32 %s, 0x20000' % (s(r + 2), n, s(r + 3)))
    S(f'''
    v_lshrrev_b32 {v(vT0)}, 3, {v(vLane)}          ; r
    v_and_b32 {v(vT1)}, 7, {v(vLane)}              ; sl
    s_and_b32 {s(sT0)}, {s(sWv)}, 1
    s_lshl_b32 {s(sT1)}, {s(sT0)}, 2               ; 4*(p&1)
    v_lshrrev_b32 {v(vT2)}, 1, {v(vT0)}            ; r>>1
    v_or_b32 {v(vT3)}, {s(sT1)}, {v(vT2)}
    v_xor_b32 {v(vT3)}, {v(vT3)}, {v(vT1)}
    v_lshlrev_b32 {v(vT3)}, 4, {v(vT3)}
    s_lshl_b32 {s(sT2)}, {s(sRt)}, 6
    s_lshl_b32 {s(sT3)}, {s(sWv)}, 3
    s_add_u32 {s(sT2)}, {s(sT2)}, {s(sT3)}         ; 64rt + 8w
    v_add_u32 {v(vX)}, {s(sT2)}, {v(vT0)}
    v_lshl_add_u32 {v(vX)}, {v(vX)}, 10, {v(vT3)}
    v_and_b32 {v(vT2)}, 1, {v(vT2)}                ; bit1(r)
    v_lshl_or_b32 {v(vT3)}, {v(vT2)}, 1, {s(sT1)}  ; 2*f = 2*bit1 + 4*(p&1)
    v_xor_b32 {v(vT3)}, {v(vT3)}, {v(vT1)}
    v_lshlrev_b32 {v(vT3)}, 4, {v(vT3)}
    v_add_u32 {v(vW)}, {s(sT3)}, {v(vT0)}          ; 8w + r
    v_mul_u32_u24 {v(vW)}, 0xc00, {v(vW)}
    s_lshl_b32 {s(sT4)}, {s(sCg)}, 7
    v_add3_u32 {v(vW)}, {v(vW)}, {v(vT3)}, {s(sT4)}
    ''')
    S(f'''
    v_lshlrev_b32 {v(vT2)}, 2, {v(vT2)}
    v_xor_b32 {v(vT2)}, {v(vT2)}, {v(vT1)}
    v_lshlrev_b32 {v(vT2)}, 4, {v(vT2)}
    s_lshl_b32 {s(sT5)}, {s(sWv)}, 7
    v_add_u32 {v(vWo)}, {s(sT5)}, {v(vT0)}
    v_lshlrev_b32 {v(vWo)}, 10, {v(vWo)}
    v_add3_u32 {v(vWo)}, {v(vWo)}, {v(vT2)}, {s(sT4)}
    v_lshrrev_b32 {v(vG)}, 4, {v(vLane)}
    v_and_b32 {v(vL15)}, 15, {v(vLane)}
    s_waitcnt lgkmcnt(0)
    s_load_dword {s(sN0)}, {s(SWS, 2)}, 0
    ''')

def stage_loads(S, c):
    slot = L_RING + (c % NSLOT) * 16384
    tag = 'st%d' % c
    if c < 8:
        S(f'''
        s_add_u32 {s(sT0)}, {s(sC0)}, {c}
        s_and_b32 {s(sT0)}, {s(sT0)}, 7
        s_lshl_b32 {s(sT1)}, {s(sT0)}, 7
        s_mul_i32 {s(sT2)}, {s(sT0)}, {64 * 3072}
        ''')
        dma(S, vX, SX, s(sT1), (sW1K, L_X + c * 8192), tag)
        S(f's_add_u32 {s(sT1)}, {s(sT1)}, 32768')
        dma(S, vX, SX, s(sT1), (sW1K, L_X + c * 8192 + 4096), tag)
        for m in range(2):
            for h in range(2):
                S(f's_add_u32 {s(sT1)}, {s(sT2)}, {1024 * (m + 1) + h * 32 * 3072}')
                dma(S, vW, SW, s(sT1), (sW1K, slot + m * 8192 + h * 4096), tag)
    elif c < 12:
        for m in range(2):
            cc = 2 * (c - 8) + m
            S(f'''
            s_add_u32 {s(sT0)}, {s(sC0)}, {cc}
            s_and_b32 {s(sT0)}, {s(sT0)}, 7
            s_mul_i32 {s(sT2)}, {s(sT0)}, {64 * 3072}
            ''')
            dma(S, vW, SW, s(sT2), (sW1K, slot + m * 8192), tag)
            S(f's_add_u32 {s(sT2)}, {s(sT2)}, {32 * 3072}')
            dma(S, vW, SW, s(sT2), (sW1K, slot + m * 8192 + 4096), tag)
    else:
        i = c - 12
        for p in range(4):
            S(f's_mov_b32 {s(sT1)}, {(32 * i + 8 * p) * 1024}')
            dma(S, vWo, SO, s(sT1), (sW4K, slot + p * 1024), tag)

vA = 12
vB0, vB1 = 20, 21
vOnes = 24
vAf = 28
vBf = 60
aK, aV = 76, 92
aGram, aSum, aCsK, aCsV = 108, 112, 116, 120
vRs, vMn = 124, 140
vFF = 22
vXres = 240
def tr_off(slot_idx, off):
    o = slot_idx * 16384 + off
    return (vB0, o) if o < 65536 else (vB1, o - 65536)

def phase1():
    S = P
    for c in range(3): stage_loads(S, c)
    S(f'''
    v_lshrrev_b32 {v(vT0)}, 1, {v(vL15)}           ; swz
    v_xor_b32 {v(vT0)}, {v(vT0)}, {v(vG)}
    v_lshlrev_b32 {v(vT0)}, 4, {v(vT0)}
    v_lshl_or_b32 {v(vT0)}, {v(vL15)}, 7, {v(vT0)}
    ''')
    for i in range(4):
        S(f'''
        s_add_u32 {s(sT0)}, {s(sWv)}, {i}
        s_and_b32 {s(sT0)}, {s(sT0)}, 3
        s_lshl_b32 {s(sT0)}, {s(sT0)}, 11
        v_or_b32 {v(vA + 2 * i)}, {s(sT0)}, {v(vT0)}
        v_xor_b32 {v(vA + 2 * i + 1)}, 64, {v(vA + 2 * i)}
        ''')
    S(f'''
    v_lshrrev_b32 {v(vT1)}, 2, {v(vL15)}           ; r
    v_lshl_add_u32 {v(vT2)}, {v(vG)}, 3, {v(vT1)}  ; row = 8g + r
    v_lshrrev_b32 {v(vT1)}, 1, {v(vT1)}            ; bit1(r)
    v_and_b32 {v(vT3)}, 1, {v(vG)}
    v_lshl_or_b32 {v(vT1)}, {v(vT3)}, 1, {v(vT1)}  ; f
    v_xor_b32 {v(vT1)}, {s(sWv)}, {v(vT1)}
    v_lshlrev_b32 {v(vT1)}, 5, {v(vT1)}
    v_lshl_or_b32 {v(vT1)}, {v(vT2)}, 7, {v(vT1)}
    v_and_b32 {v(vT3)}, 3, {v(vLane)}
    v_lshl_or_b32 {v(vT1)}, {v(vT3)}, 3, {v(vT1)}
    v_add_u32 {v(vB0)}, {L_RING}, {v(vT1)}
    v_add_u32 {v(vB1)}, {L_RING + 65536}, {v(vT1)}
    v_mov_b32 {v(vFF)}, 0xff
    ''')
    for i in range(4): S(f'v_mov_b32 {v(vOnes + i)}, 0x3f803f80')
    S(f'''
    s_add_u32 {s(sN0)}, {s(sN0)}, 0x01030507
    s_lshr_b32 {s(sN1)}, {s(sN0)}, 8
    s_lshr_b32 {s(sN2)}, {s(sN0)}, 16
    s_lshr_b32 {s(sN3)}, {s(sN0)}, 24
    ''')
    def reads(c, k):
        for m in range(2):
            for t in range(2):
                r, o = tr_off(c % NSLOT, m * 8192 + k * 4096 + t * 512)
                S(f'ds_read_b64_tr_b16 {v(vBf + 8 * k + 4 * m + 2 * t, 2)}, {v(r)} offset:{o}')
        for i in range(4):
            S(f'ds_read_b128 {v(vAf + 16 * k + 4 * i, 4)}, {v(vA + 2 * i + k)} offset:{c * 8192}')
    def mms(c, k):
        first = (c == 0 and k == 0)
        C = lambda r: '0' if first else v(r, 4)
        A = lambda i: v(vAf + 16 * k + 4 * i, 4)
        B = lambda m: v(vBf + 8 * k + 4 * m, 4)
        mm = lambda d, x, y: S(f'v_mfma_f32_16x16x32_bf16 {v(d, 4)}, {x}, {y}, {C(d)}')
        mm(aCsK, v(vOnes, 4), B(0))
        mm(aCsV, v(vOnes, 4), B(1))
        mm(aGram, A(0), A(0))
        mm(aSum, A(0), v(vOnes, 4))
        for i in range(4):
            mm(aK + 4 * i, A(i), B(0))
            mm(aV + 4 * i, A(i), B(1))
    for c in range(8):
        S.wait_vm('st%d' % c)
        S('s_barrier')
        if c == 0: stamp()
        reads(c, 0)
        stage_loads(S, c + 3)
        if c: mms(c - 1, 1)
        reads(c, 1)
        mms(c, 0)
    mms(7, 1)
    stamp()
    S(f'''
    v_and_b32 {v(vT0)}, 3, {v(vLane)}
    v_cmp_eq_u32 vcc, 1, {v(vT0)}
    v_cndmask_b32 {v(vT1)}, {v(aGram)}, {v(aGram + 1)}, vcc
    v_cndmask_b32 {v(vT2)}, {v(aSum)}, {v(aSum + 1)}, vcc
    v_cmp_eq_u32 vcc, 2, {v(vT0)}
    v_cndmask_b32 {v(vT1)}, {v(vT1)}, {v(aGram + 2)}, vcc
    v_cndmask_b32 {v(vT2)}, {v(vT2)}, {v(aSum + 2)}, vcc
    v_cmp_eq_u32 vcc, 3, {v(vT0)}
    v_cndmask_b32 {v(vT1)}, {v(vT1)}, {v(aGram + 3)}, vcc
    v_cndmask_b32 {v(vT2)}, {v(vT2)}, {v(aSum + 3)}, vcc
    v_mul_f32 {v(vT2)}, 0x3b000000, {v(vT2)}       ; mean
    v_mul_f32 {v(vT3)}, {v(vT2)}, {v(vT2)}
    s_mov_b32 {s(sT0)}, 0x3b000000
    v_fma_f32 {v(vT1)}, {v(vT1)}, {s(sT0)}, -{v(vT3)}
    v_max_f32 {v(vT1)}, 0, {v(vT1)}
    v_add_f32 {v(vT1)}, 0x3727c5ac, {v(vT1)}       ; + 1e-5
    v_rsq_f32 {v(vT1)}, {v(vT1)}
    s_lshl_b32 {s(sT0)}, {s(sWv)}, 6
    s_add_u32 {s(sT0)}, {s(sT0)}, {L_STAT1}
    v_lshl_add_u32 {v(vT3)}, {v(vL15)}, 2, {s(sT0)}
    s_mov_b32 exec_lo, 0x00f0000f
    s_mov_b32 exec_hi, 0xf0000f00
    ds_write2_b32 {v(vT3)}, {v(vT1)}, {v(vT2)} offset0:0 offset1:64
    s_mov_b64 exec, -1
    ''')
    S.wait_vm('st8')
    S('s_waitcnt lgkmcnt(0)\ns_barrier')
    for i in range(4):
        S(f'''
        s_add_u32 {s(sT0)}, {s(sWv)}, {i}
        s_and_b32 {s(sT0)}, {s(sT0)}, 3
        s_lshl_b32 {s(sT0)}, {s(sT0)}, 6
        s_add_u32 {s(sT0)}, {s(sT0)}, {L_STAT1}
        v_lshl_add_u32 {v(vT0)}, {v(vG)}, 4, {s(sT0)}
        ds_read_b128 {v(vRs + 4 * i, 4)}, {v(vT0)}
        ds_read_b128 {v(vMn + 4 * i, 4)}, {v(vT0)} offset:256
        ''')
    stage_loads(S, 11)
    for acc, cs in ((aK, aCsK), (aV, aCsV)):
        for e in range(0, 16, 2):
            S(f'v_pk_fma_f32 {v(acc + e, 2)}, {v(vMn + e, 2)}, {v(cs, 2)}, {v(acc + e, 2)} neg_lo:[1,0,0] neg_hi:[1,0,0]')
        for e in range(0, 16, 2):
            S(f'v_pk_mul_f32 {v(acc + e, 2)}, {v(acc + e, 2)}, {v(vRs + e, 2)}')
    phi(S, aK, vAf)
    pk, vv = vBf, vBf + 8
    for e in range(8):
        S(f'v_cvt_pk_bf16_f32 {v(pk + e)}, {v(aK + 2 * e)}, {v(aK + 2 * e + 1)}')
        S(f'v_cvt_pk_bf16_f32 {v(vv + e)}, {v(aV + 2 * e)}, {v(aV + 2 * e + 1)}')
    kv, zz = aGram, aSum
    S(f'''
    v_mfma_f32_16x16x32_bf16 {v(kv, 4)}, {v(pk, 4)}, {v(vv, 4)}, 0
    v_mfma_f32_16x16x32_bf16 {v(zz, 4)}, {v(pk, 4)}, {v(vOnes, 4)}, 0
    v_mfma_f32_16x16x32_bf16 {v(kv, 4)}, {v(pk + 4, 4)}, {v(vv + 4, 4)}, {v(kv, 4)}
    v_mfma_f32_16x16x32_bf16 {v(zz, 4)}, {v(pk + 4, 4)}, {v(vOnes, 4)}, {v(zz, 4)}
    s_lshl_b32 {s(sT0)}, {s(sCg)}, 2
    s_add_u32 {s(sT0)}, {s(sT0)}, {s(sWv)}         ; head
    s_lshl_b32 {s(sT1)}, {s(sT0)}, 5
    s_add_u32 {s(sT1)}, {s(sT1)}, {s(sRt)}
    s_lshl_b32 {s(sT2)}, {s(sT1)}, 10
    s_add_u32 {s(sT2)}, {s(sT2)}, {WS_KV}
    s_lshl_b32 {s(sT3)}, {s(sT1)}, 7
    s_add_u32 {s(sT3)}, {s(sT3)}, {WS_Z}
    v_lshlrev_b32 {v(vT0)}, 4, {v(vLane)}
    v_lshlrev_b32 {v(vT1)}, 4, {v(vG)}
    ''')
    for i, n in enumerate((sN0, sN1, sN2, sN3)):
        S(f'v_bfi_b32 {v(kv + i)}, {v(vFF)}, {s(n)}, {v(kv + i)}')
    S(f'buffer_store_dwordx4 {v(kv, 4)}, {v(vT0)}, {srd(SWS)}, {s(sT2)} offen sc1', 'kvst')
    for i, n in enumerate((sN0, sN1, sN2, sN3)):
        S(f'v_bfi_b32 {v(zz + i)}, {v(vFF)}, {s(n)}, {v(zz + i)}')
    S(f'''
    s_mov_b32 exec_lo, 0x00010001
    s_mov_b32 exec_hi, 0x00010001
    ''')
    S(f'buffer_store_dwordx4 {v(zz, 4)}, {v(vT1)}, {srd(SWS)}, {s(sT3)} offen sc1', 'kvst')
    S('s_mov_b64 exec, -1')
    stamp()
    aQ, aCsQ = aK, aCsK
    S(f'''
    v_and_b32 {v(vA)}, 0x7ff, {v(vA)}
    v_and_b32 {v(vA + 1)}, 0x7ff, {v(vA + 1)}
    ''')
    def reads2(ks):
        c = 8 + ks // 4; m = (ks // 2) % 2; k = ks % 2
        for t in range(2):
            r, o = tr_off(c % NSLOT, m * 8192 + k * 4096 + t * 512)
            S(f'ds_read_b64_tr_b16 {v(vBf + 8 * k + 2 * t, 2)}, {v(r)} offset:{o}')
        for i in range(4):
            S(f'ds_read_b128 {v(vAf + 16 * k + 4 * i, 4)}, {v(vA + k)} offset:{(ks // 2) * 8192 + i * 2048}')
    def mms2(ks):
        k = ks % 2
        C = lambda r: '0' if ks == 0 else v(r, 4)
        B = v(vBf + 8 * k, 4)
        S(f'v_mfma_f32_16x16x32_bf16 {v(aCsQ, 4)}, {B}, {v(vOnes, 4)}, {C(aCsQ)}')
        for i in range(4):
            S(f'v_mfma_f32_16x16x32_bf16 {v(aQ + 4 * i, 4)}, {B}, {v(vAf + 16 * k + 4 * i, 4)}, {C(aQ + 4 * i)}')
    for ks in range(16):
        if ks % 4 == 0 and ks:
            S.wait_vm('st%d' % (8 + ks // 4))
            S('s_barrier')
        reads2(ks)
        if ks % 4 == 0 and ks: stage_loads(S, 8 + ks // 4 + 3)
        if ks: mms2(ks - 1)
    S(f'''
    v_lshlrev_b32 {v(vT0)}, 2, {v(vL15)}
    v_add_u32 {v(vT0)}, {L_STAT1}, {v(vT0)}
    ''')
    for i in range(4):
        S(f'ds_read2_b32 {v(vRs + 2 * i, 2)}, {v(vT0)} offset0:{16 * i} offset1:{64 + 16 * i}')
    S(f'''
    s_sub_u32 {s(sT0)}, {s(sCg)}, {s(sC0)}
    s_and_b32 {s(sT0)}, {s(sT0)}, 7
    s_lshl_b32 {s(sT0)}, {s(sT0)}, 13
    s_add_u32 {s(sT0)}, {s(sT0)}, {s(sW1K)}
    v_and_b32 {v(vT1)}, 0x70, {v(vX)}              ; ((l&7) ^ swz) * 16
    v_lshrrev_b32 {v(vT2)}, 3, {v(vLane)}
    v_lshl_or_b32 {v(vT1)}, {v(vT2)}, 7, {v(vT1)}
    v_add_u32 {v(vT1)}, {s(sT0)}, {v(vT1)}
    ds_read_b128 {v(vXres, 4)}, {v(vT1)}
    ds_read_b128 {v(vXres + 4, 4)}, {v(vT1)} offset:4096
    ''')
    mms2(15)
    S('s_waitcnt lgkmcnt(0)\ns_barrier')
    stage_loads(S, 15)
    for i in range(4):
        for r in range(4):
            S(f'v_fma_f32 {v(aQ + 4 * i + r)}, -{v(vRs + 2 * i + 1)}, {v(aCsQ + r)}, {v(aQ + 4 * i + r)}')
        for r in range(4):
            S(f'v_mul_f32 {v(aQ + 4 * i + r)}, {v(vRs + 2 * i)}, {v(aQ + 4 * i + r)}')
    phi(S, aQ, vAf)
    g = vBf
    for i in range(3):
        S(f'v_cvt_pk_bf16_f32 {v(g + 4 * i)}, {v(aQ + 4 * i)}, {v(aQ + 4 * i + 1)}')
        S(f'v_cvt_pk_bf16_f32 {v(g + 4 * i + 1)}, {v(aQ + 4 * i + 2)}, {v(aQ + 4 * i + 3)}')
        S(f'v_mov_b32 {v(g + 4 * i + 3)}, {s(sN0)}')
    S(f'''
    v_cvt_pk_bf16_f32 {v(g + 2)}, {v(aQ + 12)}, {v(aQ + 13)}
    v_cvt_pk_bf16_f32 {v(g + 6)}, {v(aQ + 14)}, {v(aQ + 15)}
    v_mov_b32 {v(g + 10)}, 0
    s_lshl_b32 {s(sT0)}, {s(sCg)}, 2
    s_add_u32 {s(sT0)}, {s(sT0)}, {s(sWv)}         ; head
    s_lshl_b32 {s(sT1)}, {s(sRt)}, 5
    s_add_u32 {s(sT1)}, {s(sT1)}, {s(sT0)}
    s_mul_i32 {s(sT1)}, {s(sT1)}, 3072
    s_add_u32 {s(sT1)}, {s(sT1)}, {WS_PQ}
    v_lshlrev_b32 {v(vT0)}, 4, {v(vLane)}
    ''')
    for i in range(3):
        S(f'buffer_store_dwordx4 {v(g + 4 * i, 4)}, {v(vT0)}, {srd(SWS)}, {s(sT1)} offen offset:{1024 * i} sc1', 'pqst')
    stamp()

def phi(S, x, t):
    for e in range(16):
        S(f'v_mul_f32 {v(t + e)}, 0x3fb8aa3b, {v(x + e)}')
    for e in range(16):
        S(f'v_min_f32 {v(t + e)}, 0, {v(t + e)}')
        S(f'v_max_f32 {v(x + e)}, 0, {v(x + e)}')
    for e in range(16):
        S(f'v_exp_f32 {v(t + e)}, {v(t + e)}')
        S(f'v_add_f32 {v(x + e)}, 0x358637bd, {v(x + e)}')
    for e in range(0, 16, 2):
        S(f'v_pk_add_f32 {v(x + e, 2)}, {v(x + e, 2)}, {v(t + e, 2)}')

def epilogue():
    S = P
    if STAMPS:
        stamp()
        S(f'''
        s_lshl_b32 {s(sT0)}, s2, 2
        s_add_u32 {s(sT0)}, {s(sT0)}, {s(sWv)}
        s_lshl_b32 {s(sT0)}, {s(sT0)}, 7
        s_add_u32 {s(sT0)}, {s(sT0)}, {WS_STAMP}
        v_mov_b32 {v(vT1)}, 0
        ''')
        for i in range(nstamp[0]):
            S(f'v_mov_b32 {v(vT0)}, {s(sStamp + 2 * i)}')
            S(f'buffer_store_dword {v(vT0)}, {v(vT1)}, {srd(SWS)}, {s(sT0)} offen offset:{4 * i}')
    S('L_end:\ns_endpgm')

def build():
    prologue()
    phase1()
    if STOP != 'p1':
        import kern2
        kern2.rest(sys.modules[__name__])
    epilogue()
    body = text_of(finalize(P))
    hdr = open('sequential_preLN__linear_attn_block__swiglu_ffn__prompt.s.ref').read().split('; Override launch')[0]
    return f'''{hdr}; @launch grid=(256,1,1) block=(256,1,1) lds={LDS_BYTES}
.amdgcn_target "amdgcn-amd-amdhsa--gfx950"
.text
.globl {NAME}
.p2align 8
.type {NAME},@function
{NAME}:
{body}
.section .rodata,"a"
.p2align 6
.amdhsa_kernel {NAME}
  .amdhsa_next_free_vgpr 512
  .amdhsa_next_free_sgpr 102
  .amdhsa_accum_offset 256
  .amdhsa_group_segment_fixed_size 0
  .amdhsa_kernarg_size 80
  .amdhsa_user_sgpr_count 2
  .amdhsa_user_sgpr_kernarg_segment_ptr 1
  .amdhsa_system_sgpr_workgroup_id_x 1
  .amdhsa_float_denorm_mode_32 3
.end_amdhsa_kernel
'''

if __name__ == '__main__':
    out = [x for x in sys.argv[1:] if not x.startswith('--')][0]
    open(out, 'w').write(build())
```

```python
import sys
from asmlib import *

NAME = 'sequential_preLN__linear_attn_block__swiglu_ffn__prompt_kernel'
STAMPS = '--stamps' in sys.argv
STOP = None
PROBE = None
for x in sys.argv:
    if x.startswith('--probe='): PROBE = int(x.split('=')[1]); STAMPS = True
for x in sys.argv:
    if x.startswith('--stop='): STOP = x.split('=')[1]

WS_FLAG = 0x1000
WS_Z    = 0x20000
WS_ST   = 0x40000
WS_STAMP= 0x80000
WS_KV   = 0x100000
WS_PQ   = 0x200000
WS_O    = 0x500000
WS_H    = 0x700000
WS_ACT  = 0x900000
WS_SIZE = 0xE60000
OOB     = 0x7F000000

SX, SW, SO, SG, SU, SD, SOUT, SWS = 8, 12, 16, 20, 24, 28, 32, 36
sXcd, sIdx, sRq, sCg, sRt, sRb, sJ, sWv, sC0 = 40, 41, 42, 43, 44, 45, 46, 47, 48
sN0, sN1, sN2, sN3 = 49, 50, 51, 52
sT0, sT1, sT2, sT3, sT4, sT5 = 53, 54, 55, 56, 57, 58
sW1K, sW4K = 59, 60
sCnt = 61
sTP = 62
sStamp = 64
srd = lambda r: s(r, 4)

L_X = 0
L_RING = 65536
NSLOT = 5
L_MISC = L_RING + NSLOT * 16384
L_STAT1 = L_MISC
L_KVRED = L_MISC + 1024
LDS_BYTES = 163840

P = Stream()
nstamp = [0]
def stamp(S=None):
    S = P if S is None else S
    if STAMPS:
        S('s_memrealtime %s' % s(sStamp + 2 * nstamp[0], 2))
        S('s_waitcnt lgkmcnt(0)')
        nstamp[0] += 1
        assert nstamp[0] <= 18

def dma(S, vaddr, srdreg, soff, ldsaddr_expr, tag, mods=''):
    r, n = ldsaddr_expr
    if r is None: S('s_mov_b32 m0, %d' % n)
    else: S('s_add_u32 m0, %s, %d' % (s(r), n))
    S('buffer_load_dwordx4 %s, %s, %s offen %s lds' % (v(vaddr), srd(srdreg), soff, mods), tag)

vLane, vG, vL15 = 1, 2, 3
vX, vW, vWo = 4, 5, 6
vT0, vT1, vT2, vT3 = 8, 9, 10, 11
def prologue():
    S = P
    S('s_cmp_ge_u32 s2, 256\ns_cbranch_scc1 L_end')
    for r, off in ((SX, 0), (SW, 8), (SWS, 72), (SO, 16), (SG, 32), (SU, 40), (SD, 48), (SOUT, 56)):
        S('s_load_dwordx2 %s, s[0:1], %d' % (s(r, 2), off))
    if STAMPS:
        S('s_memrealtime %s' % s(sStamp, 2)); nstamp[0] = 1
    S(f'''
    v_lshrrev_b32 {v(vT0)}, 6, v0
    v_and_b32 {v(vLane)}, 63, v0
    v_readfirstlane_b32 {s(sWv)}, {v(vT0)}
    s_and_b32 {s(sXcd)}, s2, 7
    s_lshr_b32 {s(sIdx)}, s2, 3
    s_lshr_b32 {s(sRq)}, s2, 6
    s_and_b32 {s(sCg)}, {s(sIdx)}, 7
    s_lshl_b32 {s(sT0)}, {s(sXcd)}, 2
    s_add_u32 {s(sRt)}, {s(sT0)}, {s(sRq)}
    s_lshr_b32 {s(sRb)}, {s(sRt)}, 1
    s_and_b32 {s(sJ)}, {s(sIdx)}, 15
    s_mov_b32 {s(sC0)}, {s(sXcd)}
    s_lshl_b32 {s(sW1K)}, {s(sWv)}, 10
    s_lshl_b32 {s(sW4K)}, {s(sWv)}, 12
    ''')
    for r, n in ((SX, 2048 * 1024), (SW, 512 * 3072), (SWS, WS_SIZE), (SO, 512 * 1024), (SG, 512 * 2752), (SU, 512 * 2752),
                 (SD, 1376 * 1024), (SOUT, 2048 * 1024)):
        S('s_mov_b32 %s, %d\ns_mov_b32 %s, 0x20000' % (s(r + 2), n, s(r + 3)))
    S(f'''
    v_lshrrev_b32 {v(vT0)}, 3, {v(vLane)}          ; r
    v_and_b32 {v(vT1)}, 7, {v(vLane)}              ; sl
    s_and_b32 {s(sT0)}, {s(sWv)}, 1
    s_lshl_b32 {s(sT1)}, {s(sT0)}, 2               ; 4*(p&1)
    v_lshrrev_b32 {v(vT2)}, 1, {v(vT0)}            ; r>>1
    v_or_b32 {v(vT3)}, {s(sT1)}, {v(vT2)}
    v_xor_b32 {v(vT3)}, {v(vT3)}, {v(vT1)}
    v_lshlrev_b32 {v(vT3)}, 4, {v(vT3)}
    s_lshl_b32 {s(sT2)}, {s(sRt)}, 6
    s_lshl_b32 {s(sT3)}, {s(sWv)}, 3
    s_add_u32 {s(sT2)}, {s(sT2)}, {s(sT3)}         ; 64rt + 8w
    v_add_u32 {v(vX)}, {s(sT2)}, {v(vT0)}
    v_lshl_add_u32 {v(vX)}, {v(vX)}, 10, {v(vT3)}
    v_and_b32 {v(vT2)}, 1, {v(vT2)}                ; bit1(r)
    v_lshl_or_b32 {v(vT3)}, {v(vT2)}, 1, {s(sT1)}  ; 2*f = 2*bit1 + 4*(p&1)
    v_xor_b32 {v(vT3)}, {v(vT3)}, {v(vT1)}
    v_lshlrev_b32 {v(vT3)}, 4, {v(vT3)}
    v_add_u32 {v(vW)}, {s(sT3)}, {v(vT0)}          ; 8w + r
    v_mul_u32_u24 {v(vW)}, 0xc00, {v(vW)}
    s_lshl_b32 {s(sT4)}, {s(sCg)}, 7
    v_add3_u32 {v(vW)}, {v(vW)}, {v(vT3)}, {s(sT4)}
    ''')
    S(f'''
    v_lshlrev_b32 {v(vT2)}, 2, {v(vT2)}
    v_xor_b32 {v(vT2)}, {v(vT2)}, {v(vT1)}
    v_lshlrev_b32 {v(vT2)}, 4, {v(vT2)}
    s_lshl_b32 {s(sT5)}, {s(sWv)}, 7
    v_add_u32 {v(vWo)}, {s(sT5)}, {v(vT0)}
    v_lshlrev_b32 {v(vWo)}, 10, {v(vWo)}
    v_add3_u32 {v(vWo)}, {v(vWo)}, {v(vT2)}, {s(sT4)}
    v_lshrrev_b32 {v(vG)}, 4, {v(vLane)}
    v_and_b32 {v(vL15)}, 15, {v(vLane)}
    s_waitcnt lgkmcnt(0)
    s_load_dword {s(sN0)}, {s(SWS, 2)}, 0
    ''')

def stage_loads(S, c):
    slot = L_RING + (c % NSLOT) * 16384
    tag = 'st%d' % c
    if c < 8:
        S(f'''
        s_add_u32 {s(sT0)}, {s(sC0)}, {c}
        s_and_b32 {s(sT0)}, {s(sT0)}, 7
        s_lshl_b32 {s(sT1)}, {s(sT0)}, 7
        s_mul_i32 {s(sT2)}, {s(sT0)}, {64 * 3072}
        ''')
        dma(S, vX, SX, s(sT1), (sW1K, L_X + c * 8192), tag)
        S(f's_add_u32 {s(sT1)}, {s(sT1)}, 32768')
        dma(S, vX, SX, s(sT1), (sW1K, L_X + c * 8192 + 4096), tag)
        for m in range(2):
            for h in range(2):
                S(f's_add_u32 {s(sT1)}, {s(sT2)}, {1024 * (m + 1) + h * 32 * 3072}')
                dma(S, vW, SW, s(sT1), (sW1K, slot + m * 8192 + h * 4096), tag)
    elif c < 12:
        for m in range(2):
            cc = 2 * (c - 8) + m
            S(f'''
            s_add_u32 {s(sT0)}, {s(sC0)}, {cc}
            s_and_b32 {s(sT0)}, {s(sT0)}, 7
            s_mul_i32 {s(sT2)}, {s(sT0)}, {64 * 3072}
            ''')
            dma(S, vW, SW, s(sT2), (sW1K, slot + m * 8192), tag)
            S(f's_add_u32 {s(sT2)}, {s(sT2)}, {32 * 3072}')
            dma(S, vW, SW, s(sT2), (sW1K, slot + m * 8192 + 4096), tag)
    else:
        i = c - 12
        for p in range(4):
            S(f's_mov_b32 {s(sT1)}, {(32 * i + 8 * p) * 1024}')
            dma(S, vWo, SO, s(sT1), (sW4K, slot + p * 1024), tag)

vA = 12
vB0, vB1 = 20, 21
vOnes = 24
vAf = 28
vBf = 60
aK, aV = 76, 92
aGram, aSum, aCsK, aCsV = 108, 112, 116, 120
vRs, vMn = 124, 140
vFF = 22
vXres = 240
def tr_off(slot_idx, off):
    o = slot_idx * 16384 + off
    return (vB0, o) if o < 65536 else (vB1, o - 65536)

def phase1():
    S = P
    for c in range(3): stage_loads(S, c)
    S(f'''
    v_lshrrev_b32 {v(vT0)}, 1, {v(vL15)}           ; swz
    v_xor_b32 {v(vT0)}, {v(vT0)}, {v(vG)}
    v_lshlrev_b32 {v(vT0)}, 4, {v(vT0)}
    v_lshl_or_b32 {v(vT0)}, {v(vL15)}, 7, {v(vT0)}
    ''')
    for i in range(4):
        S(f'''
        s_add_u32 {s(sT0)}, {s(sWv)}, {i}
        s_and_b32 {s(sT0)}, {s(sT0)}, 3
        s_lshl_b32 {s(sT0)}, {s(sT0)}, 11
        v_or_b32 {v(vA + 2 * i)}, {s(sT0)}, {v(vT0)}
        v_xor_b32 {v(vA + 2 * i + 1)}, 64, {v(vA + 2 * i)}
        ''')
    S(f'''
    v_lshrrev_b32 {v(vT1)}, 2, {v(vL15)}           ; r
    v_lshl_add_u32 {v(vT2)}, {v(vG)}, 3, {v(vT1)}  ; row = 8g + r
    v_lshrrev_b32 {v(vT1)}, 1, {v(vT1)}            ; bit1(r)
    v_and_b32 {v(vT3)}, 1, {v(vG)}
    v_lshl_or_b32 {v(vT1)}, {v(vT3)}, 1, {v(vT1)}  ; f
    v_xor_b32 {v(vT1)}, {s(sWv)}, {v(vT1)}
    v_lshlrev_b32 {v(vT1)}, 5, {v(vT1)}
    v_lshl_or_b32 {v(vT1)}, {v(vT2)}, 7, {v(vT1)}
    v_and_b32 {v(vT3)}, 3, {v(vLane)}
    v_lshl_or_b32 {v(vT1)}, {v(vT3)}, 3, {v(vT1)}
    v_add_u32 {v(vB0)}, {L_RING}, {v(vT1)}
    v_add_u32 {v(vB1)}, {L_RING + 65536}, {v(vT1)}
    v_mov_b32 {v(vFF)}, 0xff
    ''')
    for i in range(4): S(f'v_mov_b32 {v(vOnes + i)}, 0x3f803f80')
    S(f'''
    s_add_u32 {s(sN0)}, {s(sN0)}, 0x01030507
    s_lshr_b32 {s(sN1)}, {s(sN0)}, 8
    s_lshr_b32 {s(sN2)}, {s(sN0)}, 16
    s_lshr_b32 {s(sN3)}, {s(sN0)}, 24
    ''')
    def reads(c, k):
        for m in range(2):
            for t in range(2):
                r, o = tr_off(c % NSLOT, m * 8192 + k * 4096 + t * 512)
                S(f'ds_read_b64_tr_b16 {v(vBf + 8 * k + 4 * m + 2 * t, 2)}, {v(r)} offset:{o}')
        for i in range(4):
            S(f'ds_read_b128 {v(vAf + 16 * k + 4 * i, 4)}, {v(vA + 2 * i + k)} offset:{c * 8192}')
    def mms(c, k):
        first = (c == 0 and k == 0)
        C = lambda r: '0' if first else v(r, 4)
        A = lambda i: v(vAf + 16 * k + 4 * i, 4)
        B = lambda m: v(vBf + 8 * k + 4 * m, 4)
        mm = lambda d, x, y: S(f'v_mfma_f32_16x16x32_bf16 {v(d, 4)}, {x}, {y}, {C(d)}')
        mm(aCsK, v(vOnes, 4), B(0))
        mm(aCsV, v(vOnes, 4), B(1))
        mm(aGram, A(0), A(0))
        mm(aSum, A(0), v(vOnes, 4))
        for i in range(4):
            mm(aK + 4 * i, A(i), B(0))
            mm(aV + 4 * i, A(i), B(1))
    for c in range(8):
        S.wait_vm('st%d' % c)
        S('s_barrier')
        if c == 0: stamp()
        reads(c, 0)
        stage_loads(S, c + 3)
        if c: mms(c - 1, 1)
        reads(c, 1)
        mms(c, 0)
    mms(7, 1)
    stamp()
    S(f'''
    v_and_b32 {v(vT0)}, 3, {v(vLane)}
    v_cmp_eq_u32 vcc, 1, {v(vT0)}
    v_cndmask_b32 {v(vT1)}, {v(aGram)}, {v(aGram + 1)}, vcc
    v_cndmask_b32 {v(vT2)}, {v(aSum)}, {v(aSum + 1)}, vcc
    v_cmp_eq_u32 vcc, 2, {v(vT0)}
    v_cndmask_b32 {v(vT1)}, {v(vT1)}, {v(aGram + 2)}, vcc
    v_cndmask_b32 {v(vT2)}, {v(vT2)}, {v(aSum + 2)}, vcc
    v_cmp_eq_u32 vcc, 3, {v(vT0)}
    v_cndmask_b32 {v(vT1)}, {v(vT1)}, {v(aGram + 3)}, vcc
    v_cndmask_b32 {v(vT2)}, {v(vT2)}, {v(aSum + 3)}, vcc
    v_mul_f32 {v(vT2)}, 0x3b000000, {v(vT2)}       ; mean
    v_mul_f32 {v(vT3)}, {v(vT2)}, {v(vT2)}
    s_mov_b32 {s(sT0)}, 0x3b000000
    v_fma_f32 {v(vT1)}, {v(vT1)}, {s(sT0)}, -{v(vT3)}
    v_max_f32 {v(vT1)}, 0, {v(vT1)}
    v_add_f32 {v(vT1)}, 0x3727c5ac, {v(vT1)}       ; + 1e-5
    v_rsq_f32 {v(vT1)}, {v(vT1)}
    s_lshl_b32 {s(sT0)}, {s(sWv)}, 6
    s_add_u32 {s(sT0)}, {s(sT0)}, {L_STAT1}
    v_lshl_add_u32 {v(vT3)}, {v(vL15)}, 2, {s(sT0)}
    s_mov_b32 exec_lo, 0x00f0000f
    s_mov_b32 exec_hi, 0xf0000f00
    ds_write2_b32 {v(vT3)}, {v(vT1)}, {v(vT2)} offset0:0 offset1:64
    s_mov_b64 exec, -1
    ''')
    S.wait_vm('st8')
    S('s_waitcnt lgkmcnt(0)\ns_barrier')
    for i in range(4):
        S(f'''
        s_add_u32 {s(sT0)}, {s(sWv)}, {i}
        s_and_b32 {s(sT0)}, {s(sT0)}, 3
        s_lshl_b32 {s(sT0)}, {s(sT0)}, 6
        s_add_u32 {s(sT0)}, {s(sT0)}, {L_STAT1}
        v_lshl_add_u32 {v(vT0)}, {v(vG)}, 4, {s(sT0)}
        ds_read_b128 {v(vRs + 4 * i, 4)}, {v(vT0)}
        ds_read_b128 {v(vMn + 4 * i, 4)}, {v(vT0)} offset:256
        ''')
    stage_loads(S, 11)
    for acc, cs in ((aK, aCsK), (aV, aCsV)):
        for e in range(0, 16, 2):
            S(f'v_pk_fma_f32 {v(acc + e, 2)}, {v(vMn + e, 2)}, {v(cs, 2)}, {v(acc + e, 2)} neg_lo:[1,0,0] neg_hi:[1,0,0]')
        for e in range(0, 16, 2):
            S(f'v_pk_mul_f32 {v(acc + e, 2)}, {v(acc + e, 2)}, {v(vRs + e, 2)}')
    phi(S, aK, vAf)
    pk, vv = vBf, vBf + 8
    for e in range(8):
        S(f'v_cvt_pk_bf16_f32 {v(pk + e)}, {v(aK + 2 * e)}, {v(aK + 2 * e + 1)}')
        S(f'v_cvt_pk_bf16_f32 {v(vv + e)}, {v(aV + 2 * e)}, {v(aV + 2 * e + 1)}')
    kv, zz = aGram, aSum
    S(f'''
    v_mfma_f32_16x16x32_bf16 {v(kv, 4)}, {v(pk, 4)}, {v(vv, 4)}, 0
    v_mfma_f32_16x16x32_bf16 {v(zz, 4)}, {v(pk, 4)}, {v(vOnes, 4)}, 0
    v_mfma_f32_16x16x32_bf16 {v(kv, 4)}, {v(pk + 4, 4)}, {v(vv + 4, 4)}, {v(kv, 4)}
    v_mfma_f32_16x16x32_bf16 {v(zz, 4)}, {v(pk + 4, 4)}, {v(vOnes, 4)}, {v(zz, 4)}
    s_lshl_b32 {s(sT0)}, {s(sCg)}, 2
    s_add_u32 {s(sT0)}, {s(sT0)}, {s(sWv)}         ; head
    s_lshl_b32 {s(sT1)}, {s(sT0)}, 5
    s_add_u32 {s(sT1)}, {s(sT1)}, {s(sRt)}
    s_lshl_b32 {s(sT2)}, {s(sT1)}, 10
    s_add_u32 {s(sT2)}, {s(sT2)}, {WS_KV}
    s_lshl_b32 {s(sT3)}, {s(sT1)}, 7
    s_add_u32 {s(sT3)}, {s(sT3)}, {WS_Z}
    v_lshlrev_b32 {v(vT0)}, 4, {v(vLane)}
    v_lshlrev_b32 {v(vT1)}, 4, {v(vG)}
    ''')
    for i, n in enumerate((sN0, sN1, sN2, sN3)):
        S(f'v_bfi_b32 {v(kv + i)}, {v(vFF)}, {s(n)}, {v(kv + i)}')
    S(f'buffer_store_dwordx4 {v(kv, 4)}, {v(vT0)}, {srd(SWS)}, {s(sT2)} offen sc1', 'kvst')
    for i, n in enumerate((sN0, sN1, sN2, sN3)):
        S(f'v_bfi_b32 {v(zz + i)}, {v(vFF)}, {s(n)}, {v(zz + i)}')
    S(f'''
    s_mov_b32 exec_lo, 0x00010001
    s_mov_b32 exec_hi, 0x00010001
    ''')
    S(f'buffer_store_dwordx4 {v(zz, 4)}, {v(vT1)}, {srd(SWS)}, {s(sT3)} offen sc1', 'kvst')
    S('s_mov_b64 exec, -1')
    stamp()
    aQ, aCsQ = aK, aCsK
    S(f'''
    v_and_b32 {v(vA)}, 0x7ff, {v(vA)}
    v_and_b32 {v(vA + 1)}, 0x7ff, {v(vA + 1)}
    ''')
    def reads2(ks):
        c = 8 + ks // 4; m = (ks // 2) % 2; k = ks % 2
        for t in range(2):
            r, o = tr_off(c % NSLOT, m * 8192 + k * 4096 + t * 512)
            S(f'ds_read_b64_tr_b16 {v(vBf + 8 * k + 2 * t, 2)}, {v(r)} offset:{o}')
        for i in range(4):
            S(f'ds_read_b128 {v(vAf + 16 * k + 4 * i, 4)}, {v(vA + k)} offset:{(ks // 2) * 8192 + i * 2048}')
    def mms2(ks):
        k = ks % 2
        C = lambda r: '0' if ks == 0 else v(r, 4)
        B = v(vBf + 8 * k, 4)
        S(f'v_mfma_f32_16x16x32_bf16 {v(aCsQ, 4)}, {B}, {v(vOnes, 4)}, {C(aCsQ)}')
        for i in range(4):
            S(f'v_mfma_f32_16x16x32_bf16 {v(aQ + 4 * i, 4)}, {B}, {v(vAf + 16 * k + 4 * i, 4)}, {C(aQ + 4 * i)}')
    for ks in range(16):
        if ks % 4 == 0 and ks:
            S.wait_vm('st%d' % (8 + ks // 4))
            S('s_barrier')
        reads2(ks)
        if ks % 4 == 0 and ks: stage_loads(S, 8 + ks // 4 + 3)
        if ks: mms2(ks - 1)
    S(f'''
    v_lshlrev_b32 {v(vT0)}, 2, {v(vL15)}
    v_add_u32 {v(vT0)}, {L_STAT1}, {v(vT0)}
    ''')
    for i in range(4):
        S(f'ds_read2_b32 {v(vRs + 2 * i, 2)}, {v(vT0)} offset0:{16 * i} offset1:{64 + 16 * i}')
    S(f'''
    s_sub_u32 {s(sT0)}, {s(sCg)}, {s(sC0)}
    s_and_b32 {s(sT0)}, {s(sT0)}, 7
    s_lshl_b32 {s(sT0)}, {s(sT0)}, 13
    s_add_u32 {s(sT0)}, {s(sT0)}, {s(sW1K)}
    v_and_b32 {v(vT1)}, 0x70, {v(vX)}              ; ((l&7) ^ swz) * 16
    v_lshrrev_b32 {v(vT2)}, 3, {v(vLane)}
    v_lshl_or_b32 {v(vT1)}, {v(vT2)}, 7, {v(vT1)}
    v_add_u32 {v(vT1)}, {s(sT0)}, {v(vT1)}
    ds_read_b128 {v(vXres, 4)}, {v(vT1)}
    ds_read_b128 {v(vXres + 4, 4)}, {v(vT1)} offset:4096
    ''')
    mms2(15)
    S('s_waitcnt lgkmcnt(0)\ns_barrier')
    stage_loads(S, 15)
    for i in range(4):
        for r in range(4):
            S(f'v_fma_f32 {v(aQ + 4 * i + r)}, -{v(vRs + 2 * i + 1)}, {v(aCsQ + r)}, {v(aQ + 4 * i + r)}')
        for r in range(4):
            S(f'v_mul_f32 {v(aQ + 4 * i + r)}, {v(vRs + 2 * i)}, {v(aQ + 4 * i + r)}')
    phi(S, aQ, vAf)
    g = vBf
    for i in range(3):
        S(f'v_cvt_pk_bf16_f32 {v(g + 4 * i)}, {v(aQ + 4 * i)}, {v(aQ + 4 * i + 1)}')
        S(f'v_cvt_pk_bf16_f32 {v(g + 4 * i + 1)}, {v(aQ + 4 * i + 2)}, {v(aQ + 4 * i + 3)}')
        S(f'v_mov_b32 {v(g + 4 * i + 3)}, {s(sN0)}')
    S(f'''
    v_cvt_pk_bf16_f32 {v(g + 2)}, {v(aQ + 12)}, {v(aQ + 13)}
    v_cvt_pk_bf16_f32 {v(g + 6)}, {v(aQ + 14)}, {v(aQ + 15)}
    v_mov_b32 {v(g + 10)}, 0
    s_lshl_b32 {s(sT0)}, {s(sCg)}, 2
    s_add_u32 {s(sT0)}, {s(sT0)}, {s(sWv)}         ; head
    s_lshl_b32 {s(sT1)}, {s(sRt)}, 5
    s_add_u32 {s(sT1)}, {s(sT1)}, {s(sT0)}
    s_mul_i32 {s(sT1)}, {s(sT1)}, 3072
    s_add_u32 {s(sT1)}, {s(sT1)}, {WS_PQ}
    v_lshlrev_b32 {v(vT0)}, 4, {v(vLane)}
    ''')
    for i in range(3):
        S(f'buffer_store_dwordx4 {v(g + 4 * i, 4)}, {v(vT0)}, {srd(SWS)}, {s(sT1)} offen offset:{1024 * i} sc1', 'pqst')
    stamp()

def phi(S, x, t):
    for e in range(16):
        S(f'v_mul_f32 {v(t + e)}, 0x3fb8aa3b, {v(x + e)}')
    for e in range(16):
        S(f'v_min_f32 {v(t + e)}, 0, {v(t + e)}')
        S(f'v_max_f32 {v(x + e)}, 0, {v(x + e)}')
    for e in range(16):
        S(f'v_exp_f32 {v(t + e)}, {v(t + e)}')
        S(f'v_add_f32 {v(x + e)}, 0x358637bd, {v(x + e)}')
    for e in range(0, 16, 2):
        S(f'v_pk_add_f32 {v(x + e, 2)}, {v(x + e, 2)}, {v(t + e, 2)}')

def epilogue():
    S = P
    if PROBE is not None:
        stamp()
        k = PROBE if PROBE >= 0 else nstamp[0] - 1
        S(f'''
        s_add_u32 {s(sT0)}, {s(sStamp + 2 * k)}, 6000
        s_mov_b32 {s(sCnt)}, 0
        L_probe:
        s_memrealtime {s(sTP, 2)}
        s_waitcnt lgkmcnt(0)
        s_add_u32 {s(sCnt)}, {s(sCnt)}, 1
        s_cmp_gt_u32 {s(sCnt)}, 100000
        s_cbranch_scc1 L_end
        s_sub_u32 {s(sT1)}, {s(sTP)}, {s(sT0)}
        s_cmp_lt_i32 {s(sT1)}, 0
        s_cbranch_scc1 L_probe
        ''')
    elif STAMPS:
        stamp()
        S(f'''
        s_lshl_b32 {s(sT0)}, s2, 2
        s_add_u32 {s(sT0)}, {s(sT0)}, {s(sWv)}
        s_lshl_b32 {s(sT0)}, {s(sT0)}, 7
        s_add_u32 {s(sT0)}, {s(sT0)}, {WS_STAMP}
        v_mov_b32 {v(vT1)}, 0
        ''')
        for i in range(nstamp[0]):
            S(f'v_mov_b32 {v(vT0)}, {s(sStamp + 2 * i)}')
            S(f'buffer_store_dword {v(vT0)}, {v(vT1)}, {srd(SWS)}, {s(sT0)} offen offset:{4 * i}')
    S('L_end:\ns_endpgm')

def build():
    prologue()
    phase1()
    if STOP != 'p1':
        import kern2
        kern2.rest(sys.modules[__name__])
    epilogue()
    body = text_of(finalize(P))
    hdr = open('sequential_preLN__linear_attn_block__swiglu_ffn__prompt.s.ref').read().split('; Override launch')[0]
    return f'''{hdr}; @launch grid=(256,1,1) block=(256,1,1) lds={LDS_BYTES}
.amdgcn_target "amdgcn-amd-amdhsa--gfx950"
.text
.globl {NAME}
.p2align 8
.type {NAME},@function
{NAME}:
{body}
.section .rodata,"a"
.p2align 6
.amdhsa_kernel {NAME}
  .amdhsa_next_free_vgpr 512
  .amdhsa_next_free_sgpr 102
  .amdhsa_accum_offset 256
  .amdhsa_group_segment_fixed_size 0
  .amdhsa_kernarg_size 80
  .amdhsa_user_sgpr_count 2
  .amdhsa_user_sgpr_kernarg_segment_ptr 1
  .amdhsa_system_sgpr_workgroup_id_x 1
  .amdhsa_float_denorm_mode_32 3
.end_amdhsa_kernel
'''

if __name__ == '__main__':
    out = [x for x in sys.argv[1:] if not x.startswith('--')][0]
    open(out, 'w').write(build())
```

```python
import sys
from asmlib import *

NAME = 'sequential_preLN__linear_attn_block__swiglu_ffn__prompt_kernel'
STAMPS = '--stamps' in sys.argv
STOP = None
PROBE = None
PROBEWG = None
for x in sys.argv:
    if x.startswith('--probewg='): PROBEWG = int(x.split('=')[1])
for x in sys.argv:
    if x.startswith('--probe='): PROBE = int(x.split('=')[1]); STAMPS = True
for x in sys.argv:
    if x.startswith('--stop='): STOP = x.split('=')[1]

WS_FLAG = 0x1000
WS_Z    = 0x20000
WS_ST   = 0x40000
WS_STAMP= 0x80000
WS_KV   = 0x100000
WS_PQ   = 0x200000
WS_O    = 0x500000
WS_H    = 0x700000
WS_ACT  = 0x900000
WS_SIZE = 0xE60000
OOB     = 0x7F000000

SX, SW, SO, SG, SU, SD, SOUT, SWS = 8, 12, 16, 20, 24, 28, 32, 36
sXcd, sIdx, sRq, sCg, sRt, sRb, sJ, sWv, sC0 = 40, 41, 42, 43, 44, 45, 46, 47, 48
sN0, sN1, sN2, sN3 = 49, 50, 51, 52
sT0, sT1, sT2, sT3, sT4, sT5 = 53, 54, 55, 56, 57, 58
sW1K, sW4K = 59, 60
sCnt = 61
sTP = 62
sStamp = 64
srd = lambda r: s(r, 4)

L_X = 0
L_RING = 65536
NSLOT = 5
L_MISC = L_RING + NSLOT * 16384
L_STAT1 = L_MISC
L_KVRED = L_MISC + 1024
LDS_BYTES = 163840

P = Stream()
nstamp = [0]
def stamp(S=None):
    S = P if S is None else S
    if STAMPS:
        S('s_memrealtime %s' % s(sStamp + 2 * nstamp[0], 2))
        S('s_waitcnt lgkmcnt(0)')
        nstamp[0] += 1
        assert nstamp[0] <= 18

def dma(S, vaddr, srdreg, soff, ldsaddr_expr, tag, mods=''):
    r, n = ldsaddr_expr
    if r is None: S('s_mov_b32 m0, %d' % n)
    else: S('s_add_u32 m0, %s, %d' % (s(r), n))
    S('buffer_load_dwordx4 %s, %s, %s offen %s lds' % (v(vaddr), srd(srdreg), soff, mods), tag)

vLane, vG, vL15 = 1, 2, 3
vX, vW, vWo = 4, 5, 6
vT0, vT1, vT2, vT3 = 8, 9, 10, 11
def prologue():
    S = P
    S('s_cmp_ge_u32 s2, 256\ns_cbranch_scc1 L_end')
    for r, off in ((SX, 0), (SW, 8), (SWS, 72), (SO, 16), (SG, 32), (SU, 40), (SD, 48), (SOUT, 56)):
        S('s_load_dwordx2 %s, s[0:1], %d' % (s(r, 2), off))
    if STAMPS:
        S('s_memrealtime %s' % s(sStamp, 2)); nstamp[0] = 1
    S(f'''
    v_lshrrev_b32 {v(vT0)}, 6, v0
    v_and_b32 {v(vLane)}, 63, v0
    v_readfirstlane_b32 {s(sWv)}, {v(vT0)}
    s_and_b32 {s(sXcd)}, s2, 7
    s_lshr_b32 {s(sIdx)}, s2, 3
    s_lshr_b32 {s(sRq)}, s2, 6
    s_and_b32 {s(sCg)}, {s(sIdx)}, 7
    s_lshl_b32 {s(sT0)}, {s(sXcd)}, 2
    s_add_u32 {s(sRt)}, {s(sT0)}, {s(sRq)}
    s_lshr_b32 {s(sRb)}, {s(sRt)}, 1
    s_and_b32 {s(sJ)}, {s(sIdx)}, 15
    s_mov_b32 {s(sC0)}, {s(sXcd)}
    s_lshl_b32 {s(sW1K)}, {s(sWv)}, 10
    s_lshl_b32 {s(sW4K)}, {s(sWv)}, 12
    ''')
    for r, n in ((SX, 2048 * 1024), (SW, 512 * 3072), (SWS, WS_SIZE), (SO, 512 * 1024), (SG, 512 * 2752), (SU, 512 * 2752),
                 (SD, 1376 * 1024), (SOUT, 2048 * 1024)):
        S('s_mov_b32 %s, %d\ns_mov_b32 %s, 0x20000' % (s(r + 2), n, s(r + 3)))
    S(f'''
    v_lshrrev_b32 {v(vT0)}, 3, {v(vLane)}          ; r
    v_and_b32 {v(vT1)}, 7, {v(vLane)}              ; sl
    s_and_b32 {s(sT0)}, {s(sWv)}, 1
    s_lshl_b32 {s(sT1)}, {s(sT0)}, 2               ; 4*(p&1)
    v_lshrrev_b32 {v(vT2)}, 1, {v(vT0)}            ; r>>1
    v_or_b32 {v(vT3)}, {s(sT1)}, {v(vT2)}
    v_xor_b32 {v(vT3)}, {v(vT3)}, {v(vT1)}
    v_lshlrev_b32 {v(vT3)}, 4, {v(vT3)}
    s_lshl_b32 {s(sT2)}, {s(sRt)}, 6
    s_lshl_b32 {s(sT3)}, {s(sWv)}, 3
    s_add_u32 {s(sT2)}, {s(sT2)}, {s(sT3)}         ; 64rt + 8w
    v_add_u32 {v(vX)}, {s(sT2)}, {v(vT0)}
    v_lshl_add_u32 {v(vX)}, {v(vX)}, 10, {v(vT3)}
    v_and_b32 {v(vT2)}, 1, {v(vT2)}                ; bit1(r)
    v_lshl_or_b32 {v(vT3)}, {v(vT2)}, 1, {s(sT1)}  ; 2*f = 2*bit1 + 4*(p&1)
    v_xor_b32 {v(vT3)}, {v(vT3)}, {v(vT1)}
    v_lshlrev_b32 {v(vT3)}, 4, {v(vT3)}
    v_add_u32 {v(vW)}, {s(sT3)}, {v(vT0)}          ; 8w + r
    v_mul_u32_u24 {v(vW)}, 0xc00, {v(vW)}
    s_lshl_b32 {s(sT4)}, {s(sCg)}, 7
    v_add3_u32 {v(vW)}, {v(vW)}, {v(vT3)}, {s(sT4)}
    ''')
    S(f'''
    v_lshlrev_b32 {v(vT2)}, 2, {v(vT2)}
    v_xor_b32 {v(vT2)}, {v(vT2)}, {v(vT1)}
    v_lshlrev_b32 {v(vT2)}, 4, {v(vT2)}
    s_lshl_b32 {s(sT5)}, {s(sWv)}, 7
    v_add_u32 {v(vWo)}, {s(sT5)}, {v(vT0)}
    v_lshlrev_b32 {v(vWo)}, 10, {v(vWo)}
    v_add3_u32 {v(vWo)}, {v(vWo)}, {v(vT2)}, {s(sT4)}
    v_lshrrev_b32 {v(vG)}, 4, {v(vLane)}
    v_and_b32 {v(vL15)}, 15, {v(vLane)}
    s_waitcnt lgkmcnt(0)
    s_load_dword {s(sN0)}, {s(SWS, 2)}, 0
    ''')
    for x in sys.argv:
        if x.startswith('--exp='):
            n = int(x.split('=')[1])
            stamp()
            S(f'''
            s_mul_i32 {s(sT0)}, s2, {43 * 128}
            v_min_u32 {v(vT0)}, {n - 1}, {v(vLane)}
            v_lshlrev_b32 {v(vT0)}, 7, {v(vT0)}
            s_cmp_eq_u32 {s(sWv)}, 0
            s_cbranch_scc0 L_e1
            buffer_load_dword {v(vT1)}, {v(vT0)}, {srd(SG)}, {s(sT0)} offen
            L_e1:
            s_cmp_eq_u32 {s(sWv)}, 1
            s_cbranch_scc0 L_e2
            buffer_load_dword {v(vT1)}, {v(vT0)}, {srd(SU)}, {s(sT0)} offen
            L_e2:
            s_cmp_eq_u32 {s(sWv)}, 2
            s_cbranch_scc0 L_e3
            buffer_load_dword {v(vT1)}, {v(vT0)}, {srd(SD)}, {s(sT0)} offen
            L_e3:
            s_cmp_eq_u32 {s(sWv)}, 3
            s_cbranch_scc0 L_e4
            buffer_load_dword {v(vT1)}, {v(vT0)}, {srd(SX)}, {s(sT0)} offen
            L_e4:
            s_waitcnt vmcnt(0)
            ''')
            stamp()

def stage_loads(S, c):
    slot = L_RING + (c % NSLOT) * 16384
    tag = 'st%d' % c
    if c < 8:
        S(f'''
        s_add_u32 {s(sT0)}, {s(sC0)}, {c}
        s_and_b32 {s(sT0)}, {s(sT0)}, 7
        s_lshl_b32 {s(sT1)}, {s(sT0)}, 7
        s_mul_i32 {s(sT2)}, {s(sT0)}, {64 * 3072}
        ''')
        dma(S, vX, SX, s(sT1), (sW1K, L_X + c * 8192), tag)
        S(f's_add_u32 {s(sT1)}, {s(sT1)}, 32768')
        dma(S, vX, SX, s(sT1), (sW1K, L_X + c * 8192 + 4096), tag)
        for m in range(2):
            for h in range(2):
                S(f's_add_u32 {s(sT1)}, {s(sT2)}, {1024 * (m + 1) + h * 32 * 3072}')
                dma(S, vW, SW, s(sT1), (sW1K, slot + m * 8192 + h * 4096), tag)
    elif c < 12:
        for m in range(2):
            cc = 2 * (c - 8) + m
            S(f'''
            s_add_u32 {s(sT0)}, {s(sC0)}, {cc}
            s_and_b32 {s(sT0)}, {s(sT0)}, 7
            s_mul_i32 {s(sT2)}, {s(sT0)}, {64 * 3072}
            ''')
            dma(S, vW, SW, s(sT2), (sW1K, slot + m * 8192), tag)
            S(f's_add_u32 {s(sT2)}, {s(sT2)}, {32 * 3072}')
            dma(S, vW, SW, s(sT2), (sW1K, slot + m * 8192 + 4096), tag)
    else:
        i = c - 12
        for p in range(4):
            S(f's_mov_b32 {s(sT1)}, {(32 * i + 8 * p) * 1024}')
            dma(S, vWo, SO, s(sT1), (sW4K, slot + p * 1024), tag)

vA = 12
vB0, vB1 = 20, 21
vOnes = 24
vAf = 28
vBf = 60
aK, aV = 76, 92
aGram, aSum, aCsK, aCsV = 108, 112, 116, 120
vRs, vMn = 124, 140
vFF = 22
vXres = 240
def tr_off(slot_idx, off):
    o = slot_idx * 16384 + off
    return (vB0, o) if o < 65536 else (vB1, o - 65536)

def phase1():
    S = P
    for c in range(3): stage_loads(S, c)
    S(f'''
    v_lshrrev_b32 {v(vT0)}, 1, {v(vL15)}           ; swz
    v_xor_b32 {v(vT0)}, {v(vT0)}, {v(vG)}
    v_lshlrev_b32 {v(vT0)}, 4, {v(vT0)}
    v_lshl_or_b32 {v(vT0)}, {v(vL15)}, 7, {v(vT0)}
    ''')
    for i in range(4):
        S(f'''
        s_add_u32 {s(sT0)}, {s(sWv)}, {i}
        s_and_b32 {s(sT0)}, {s(sT0)}, 3
        s_lshl_b32 {s(sT0)}, {s(sT0)}, 11
        v_or_b32 {v(vA + 2 * i)}, {s(sT0)}, {v(vT0)}
        v_xor_b32 {v(vA + 2 * i + 1)}, 64, {v(vA + 2 * i)}
        ''')
    S(f'''
    v_lshrrev_b32 {v(vT1)}, 2, {v(vL15)}           ; r
    v_lshl_add_u32 {v(vT2)}, {v(vG)}, 3, {v(vT1)}  ; row = 8g + r
    v_lshrrev_b32 {v(vT1)}, 1, {v(vT1)}            ; bit1(r)
    v_and_b32 {v(vT3)}, 1, {v(vG)}
    v_lshl_or_b32 {v(vT1)}, {v(vT3)}, 1, {v(vT1)}  ; f
    v_xor_b32 {v(vT1)}, {s(sWv)}, {v(vT1)}
    v_lshlrev_b32 {v(vT1)}, 5, {v(vT1)}
    v_lshl_or_b32 {v(vT1)}, {v(vT2)}, 7, {v(vT1)}
    v_and_b32 {v(vT3)}, 3, {v(vLane)}
    v_lshl_or_b32 {v(vT1)}, {v(vT3)}, 3, {v(vT1)}
    v_add_u32 {v(vB0)}, {L_RING}, {v(vT1)}
    v_add_u32 {v(vB1)}, {L_RING + 65536}, {v(vT1)}
    v_mov_b32 {v(vFF)}, 0xff
    ''')
    for i in range(4): S(f'v_mov_b32 {v(vOnes + i)}, 0x3f803f80')
    S(f'''
    s_add_u32 {s(sN0)}, {s(sN0)}, 0x01030507
    s_lshr_b32 {s(sN1)}, {s(sN0)}, 8
    s_lshr_b32 {s(sN2)}, {s(sN0)}, 16
    s_lshr_b32 {s(sN3)}, {s(sN0)}, 24
    ''')
    def reads(c, k):
        for m in range(2):
            for t in range(2):
                r, o = tr_off(c % NSLOT, m * 8192 + k * 4096 + t * 512)
                S(f'ds_read_b64_tr_b16 {v(vBf + 8 * k + 4 * m + 2 * t, 2)}, {v(r)} offset:{o}')
        for i in range(4):
            S(f'ds_read_b128 {v(vAf + 16 * k + 4 * i, 4)}, {v(vA + 2 * i + k)} offset:{c * 8192}')
    def mms(c, k):
        first = (c == 0 and k == 0)
        C = lambda r: '0' if first else v(r, 4)
        A = lambda i: v(vAf + 16 * k + 4 * i, 4)
        B = lambda m: v(vBf + 8 * k + 4 * m, 4)
        mm = lambda d, x, y: S(f'v_mfma_f32_16x16x32_bf16 {v(d, 4)}, {x}, {y}, {C(d)}')
        mm(aCsK, v(vOnes, 4), B(0))
        mm(aCsV, v(vOnes, 4), B(1))
        mm(aGram, A(0), A(0))
        mm(aSum, A(0), v(vOnes, 4))
        for i in range(4):
            mm(aK + 4 * i, A(i), B(0))
            mm(aV + 4 * i, A(i), B(1))
    for c in range(8):
        S.wait_vm('st%d' % c)
        S('s_barrier')
        if c == 0: stamp()
        reads(c, 0)
        stage_loads(S, c + 3)
        if c: mms(c - 1, 1)
        reads(c, 1)
        mms(c, 0)
    mms(7, 1)
    stamp()
    S(f'''
    v_and_b32 {v(vT0)}, 3, {v(vLane)}
    v_cmp_eq_u32 vcc, 1, {v(vT0)}
    v_cndmask_b32 {v(vT1)}, {v(aGram)}, {v(aGram + 1)}, vcc
    v_cndmask_b32 {v(vT2)}, {v(aSum)}, {v(aSum + 1)}, vcc
    v_cmp_eq_u32 vcc, 2, {v(vT0)}
    v_cndmask_b32 {v(vT1)}, {v(vT1)}, {v(aGram + 2)}, vcc
    v_cndmask_b32 {v(vT2)}, {v(vT2)}, {v(aSum + 2)}, vcc
    v_cmp_eq_u32 vcc, 3, {v(vT0)}
    v_cndmask_b32 {v(vT1)}, {v(vT1)}, {v(aGram + 3)}, vcc
    v_cndmask_b32 {v(vT2)}, {v(vT2)}, {v(aSum + 3)}, vcc
    v_mul_f32 {v(vT2)}, 0x3b000000, {v(vT2)}       ; mean
    v_mul_f32 {v(vT3)}, {v(vT2)}, {v(vT2)}
    s_mov_b32 {s(sT0)}, 0x3b000000
    v_fma_f32 {v(vT1)}, {v(vT1)}, {s(sT0)}, -{v(vT3)}
    v_max_f32 {v(vT1)}, 0, {v(vT1)}
    v_add_f32 {v(vT1)}, 0x3727c5ac, {v(vT1)}       ; + 1e-5
    v_rsq_f32 {v(vT1)}, {v(vT1)}
    s_lshl_b32 {s(sT0)}, {s(sWv)}, 6
    s_add_u32 {s(sT0)}, {s(sT0)}, {L_STAT1}
    v_lshl_add_u32 {v(vT3)}, {v(vL15)}, 2, {s(sT0)}
    s_mov_b32 exec_lo, 0x00f0000f
    s_mov_b32 exec_hi, 0xf0000f00
    ds_write2_b32 {v(vT3)}, {v(vT1)}, {v(vT2)} offset0:0 offset1:64
    s_mov_b64 exec, -1
    ''')
    S.wait_vm('st8')
    S('s_waitcnt lgkmcnt(0)\ns_barrier')
    for i in range(4):
        S(f'''
        s_add_u32 {s(sT0)}, {s(sWv)}, {i}
        s_and_b32 {s(sT0)}, {s(sT0)}, 3
        s_lshl_b32 {s(sT0)}, {s(sT0)}, 6
        s_add_u32 {s(sT0)}, {s(sT0)}, {L_STAT1}
        v_lshl_add_u32 {v(vT0)}, {v(vG)}, 4, {s(sT0)}
        ds_read_b128 {v(vRs + 4 * i, 4)}, {v(vT0)}
        ds_read_b128 {v(vMn + 4 * i, 4)}, {v(vT0)} offset:256
        ''')
    stage_loads(S, 11)
    for acc, cs in ((aK, aCsK), (aV, aCsV)):
        for e in range(0, 16, 2):
            S(f'v_pk_fma_f32 {v(acc + e, 2)}, {v(vMn + e, 2)}, {v(cs, 2)}, {v(acc + e, 2)} neg_lo:[1,0,0] neg_hi:[1,0,0]')
        for e in range(0, 16, 2):
            S(f'v_pk_mul_f32 {v(acc + e, 2)}, {v(acc + e, 2)}, {v(vRs + e, 2)}')
    phi(S, aK, vAf)
    pk, vv = vBf, vBf + 8
    for e in range(8):
        S(f'v_cvt_pk_bf16_f32 {v(pk + e)}, {v(aK + 2 * e)}, {v(aK + 2 * e + 1)}')
        S(f'v_cvt_pk_bf16_f32 {v(vv + e)}, {v(aV + 2 * e)}, {v(aV + 2 * e + 1)}')
    kv, zz = aGram, aSum
    S(f'''
    v_mfma_f32_16x16x32_bf16 {v(kv, 4)}, {v(pk, 4)}, {v(vv, 4)}, 0
    v_mfma_f32_16x16x32_bf16 {v(zz, 4)}, {v(pk, 4)}, {v(vOnes, 4)}, 0
    v_mfma_f32_16x16x32_bf16 {v(kv, 4)}, {v(pk + 4, 4)}, {v(vv + 4, 4)}, {v(kv, 4)}
    v_mfma_f32_16x16x32_bf16 {v(zz, 4)}, {v(pk + 4, 4)}, {v(vOnes, 4)}, {v(zz, 4)}
    s_lshl_b32 {s(sT0)}, {s(sCg)}, 2
    s_add_u32 {s(sT0)}, {s(sT0)}, {s(sWv)}         ; head
    s_lshl_b32 {s(sT1)}, {s(sT0)}, 5
    s_add_u32 {s(sT1)}, {s(sT1)}, {s(sRt)}
    s_lshl_b32 {s(sT2)}, {s(sT1)}, 10
    s_add_u32 {s(sT2)}, {s(sT2)}, {WS_KV}
    s_lshl_b32 {s(sT3)}, {s(sT1)}, 7
    s_add_u32 {s(sT3)}, {s(sT3)}, {WS_Z}
    v_lshlrev_b32 {v(vT0)}, 4, {v(vLane)}
    v_lshlrev_b32 {v(vT1)}, 4, {v(vG)}
    ''')
    for i, n in enumerate((sN0, sN1, sN2, sN3)):
        S(f'v_bfi_b32 {v(kv + i)}, {v(vFF)}, {s(n)}, {v(kv + i)}')
    S(f'buffer_store_dwordx4 {v(kv, 4)}, {v(vT0)}, {srd(SWS)}, {s(sT2)} offen sc1', 'kvst')
    for i, n in enumerate((sN0, sN1, sN2, sN3)):
        S(f'v_bfi_b32 {v(zz + i)}, {v(vFF)}, {s(n)}, {v(zz + i)}')
    S(f'''
    s_mov_b32 exec_lo, 0x00010001
    s_mov_b32 exec_hi, 0x00010001
    ''')
    S(f'buffer_store_dwordx4 {v(zz, 4)}, {v(vT1)}, {srd(SWS)}, {s(sT3)} offen sc1', 'kvst')
    S('s_mov_b64 exec, -1')
    stamp()
    aQ, aCsQ = aK, aCsK
    S(f'''
    v_and_b32 {v(vA)}, 0x7ff, {v(vA)}
    v_and_b32 {v(vA + 1)}, 0x7ff, {v(vA + 1)}
    ''')
    def reads2(ks):
        c = 8 + ks // 4; m = (ks // 2) % 2; k = ks % 2
        for t in range(2):
            r, o = tr_off(c % NSLOT, m * 8192 + k * 4096 + t * 512)
            S(f'ds_read_b64_tr_b16 {v(vBf + 8 * k + 2 * t, 2)}, {v(r)} offset:{o}')
        for i in range(4):
            S(f'ds_read_b128 {v(vAf + 16 * k + 4 * i, 4)}, {v(vA + k)} offset:{(ks // 2) * 8192 + i * 2048}')
    def mms2(ks):
        k = ks % 2
        C = lambda r: '0' if ks == 0 else v(r, 4)
        B = v(vBf + 8 * k, 4)
        S(f'v_mfma_f32_16x16x32_bf16 {v(aCsQ, 4)}, {B}, {v(vOnes, 4)}, {C(aCsQ)}')
        for i in range(4):
            S(f'v_mfma_f32_16x16x32_bf16 {v(aQ + 4 * i, 4)}, {B}, {v(vAf + 16 * k + 4 * i, 4)}, {C(aQ + 4 * i)}')
    for ks in range(16):
        if ks % 4 == 0 and ks:
            S.wait_vm('st%d' % (8 + ks // 4))
            S('s_barrier')
        reads2(ks)
        if ks % 4 == 0 and ks: stage_loads(S, 8 + ks // 4 + 3)
        if ks: mms2(ks - 1)
    S(f'''
    v_lshlrev_b32 {v(vT0)}, 2, {v(vL15)}
    v_add_u32 {v(vT0)}, {L_STAT1}, {v(vT0)}
    ''')
    for i in range(4):
        S(f'ds_read2_b32 {v(vRs + 2 * i, 2)}, {v(vT0)} offset0:{16 * i} offset1:{64 + 16 * i}')
    S(f'''
    s_sub_u32 {s(sT0)}, {s(sCg)}, {s(sC0)}
    s_and_b32 {s(sT0)}, {s(sT0)}, 7
    s_lshl_b32 {s(sT0)}, {s(sT0)}, 13
    s_add_u32 {s(sT0)}, {s(sT0)}, {s(sW1K)}
    v_and_b32 {v(vT1)}, 0x70, {v(vX)}              ; ((l&7) ^ swz) * 16
    v_lshrrev_b32 {v(vT2)}, 3, {v(vLane)}
    v_lshl_or_b32 {v(vT1)}, {v(vT2)}, 7, {v(vT1)}
    v_add_u32 {v(vT1)}, {s(sT0)}, {v(vT1)}
    ds_read_b128 {v(vXres, 4)}, {v(vT1)}
    ds_read_b128 {v(vXres + 4, 4)}, {v(vT1)} offset:4096
    ''')
    mms2(15)
    S('s_waitcnt lgkmcnt(0)\ns_barrier')
    stage_loads(S, 15)
    for i in range(4):
        for r in range(4):
            S(f'v_fma_f32 {v(aQ + 4 * i + r)}, -{v(vRs + 2 * i + 1)}, {v(aCsQ + r)}, {v(aQ + 4 * i + r)}')
        for r in range(4):
            S(f'v_mul_f32 {v(aQ + 4 * i + r)}, {v(vRs + 2 * i)}, {v(aQ + 4 * i + r)}')
    phi(S, aQ, vAf)
    g = vBf
    for i in range(3):
        S(f'v_cvt_pk_bf16_f32 {v(g + 4 * i)}, {v(aQ + 4 * i)}, {v(aQ + 4 * i + 1)}')
        S(f'v_cvt_pk_bf16_f32 {v(g + 4 * i + 1)}, {v(aQ + 4 * i + 2)}, {v(aQ + 4 * i + 3)}')
        S(f'v_mov_b32 {v(g + 4 * i + 3)}, {s(sN0)}')
    S(f'''
    v_cvt_pk_bf16_f32 {v(g + 2)}, {v(aQ + 12)}, {v(aQ + 13)}
    v_cvt_pk_bf16_f32 {v(g + 6)}, {v(aQ + 14)}, {v(aQ + 15)}
    v_mov_b32 {v(g + 10)}, 0
    s_lshl_b32 {s(sT0)}, {s(sCg)}, 2
    s_add_u32 {s(sT0)}, {s(sT0)}, {s(sWv)}         ; head
    s_lshl_b32 {s(sT1)}, {s(sRt)}, 5
    s_add_u32 {s(sT1)}, {s(sT1)}, {s(sT0)}
    s_mul_i32 {s(sT1)}, {s(sT1)}, 3072
    s_add_u32 {s(sT1)}, {s(sT1)}, {WS_PQ}
    v_lshlrev_b32 {v(vT0)}, 4, {v(vLane)}
    ''')
    for i in range(3):
        S(f'buffer_store_dwordx4 {v(g + 4 * i, 4)}, {v(vT0)}, {srd(SWS)}, {s(sT1)} offen offset:{1024 * i} sc1', 'pqst')
    stamp()

def phi(S, x, t):
    for e in range(16):
        S(f'v_mul_f32 {v(t + e)}, 0x3fb8aa3b, {v(x + e)}')
    for e in range(16):
        S(f'v_min_f32 {v(t + e)}, 0, {v(t + e)}')
        S(f'v_max_f32 {v(x + e)}, 0, {v(x + e)}')
    for e in range(16):
        S(f'v_exp_f32 {v(t + e)}, {v(t + e)}')
        S(f'v_add_f32 {v(x + e)}, 0x358637bd, {v(x + e)}')
    for e in range(0, 16, 2):
        S(f'v_pk_add_f32 {v(x + e, 2)}, {v(x + e, 2)}, {v(t + e, 2)}')

def epilogue():
    S = P
    if PROBE is not None:
        stamp()
        k = PROBE if PROBE >= 0 else nstamp[0] - 1
        if PROBEWG is not None: S(f's_cmp_lg_u32 s2, {PROBEWG}\ns_cbranch_scc1 L_end')
        S(f'''
        s_add_u32 {s(sT0)}, {s(sStamp + 2 * k)}, 6000
        s_mov_b32 {s(sCnt)}, 0
        L_probe:
        s_memrealtime {s(sTP, 2)}
        s_waitcnt lgkmcnt(0)
        s_add_u32 {s(sCnt)}, {s(sCnt)}, 1
        s_cmp_gt_u32 {s(sCnt)}, 100000
        s_cbranch_scc1 L_end
        s_sub_u32 {s(sT1)}, {s(sTP)}, {s(sT0)}
        s_cmp_lt_i32 {s(sT1)}, 0
        s_cbranch_scc1 L_probe
        ''')
    elif STAMPS:
        stamp()
        S(f'''
        s_lshl_b32 {s(sT0)}, s2, 2
        s_add_u32 {s(sT0)}, {s(sT0)}, {s(sWv)}
        s_lshl_b32 {s(sT0)}, {s(sT0)}, 7
        s_add_u32 {s(sT0)}, {s(sT0)}, {WS_STAMP}
        v_mov_b32 {v(vT1)}, 0
        ''')
        for i in range(nstamp[0]):
            S(f'v_mov_b32 {v(vT0)}, {s(sStamp + 2 * i)}')
            S(f'buffer_store_dword {v(vT0)}, {v(vT1)}, {srd(SWS)}, {s(sT0)} offen offset:{4 * i}')
    S('L_end:\ns_endpgm')

def build():
    prologue()
    phase1()
    if STOP != 'p1':
        import kern2
        kern2.rest(sys.modules[__name__])
    epilogue()
    body = text_of(finalize(P))
    hdr = open('sequential_preLN__linear_attn_block__swiglu_ffn__prompt.s.ref').read().split('; Override launch')[0]
    return f'''{hdr}; @launch grid=(256,1,1) block=(256,1,1) lds={LDS_BYTES}
.amdgcn_target "amdgcn-amd-amdhsa--gfx950"
.text
.globl {NAME}
.p2align 8
.type {NAME},@function
{NAME}:
{body}
.section .rodata,"a"
.p2align 6
.amdhsa_kernel {NAME}
  .amdhsa_next_free_vgpr 512
  .amdhsa_next_free_sgpr 102
  .amdhsa_accum_offset 256
  .amdhsa_group_segment_fixed_size 0
  .amdhsa_kernarg_size 80
  .amdhsa_user_sgpr_count 2
  .amdhsa_user_sgpr_kernarg_segment_ptr 1
  .amdhsa_system_sgpr_workgroup_id_x 1
  .amdhsa_float_denorm_mode_32 3
.end_amdhsa_kernel
'''

if __name__ == '__main__':
    out = [x for x in sys.argv[1:] if not x.startswith('--')][0]
    open(out, 'w').write(build())
```
